```python
import torch

def _softmax(x, axis=-1):
    return torch.softmax(x, dim=axis)
def _gelu(x):
    return torch.nn.functional.gelu(x, approximate="tanh")
def _silu(x):
    return torch.nn.functional.silu(x)
def _sigmoid(x):
    return torch.sigmoid(x)
def _layernorm(x, axis=-1, eps=1e-5):
    m = x.mean(dim=axis, keepdim=True)
    v = x.var(dim=axis, keepdim=True, unbiased=False)
    return (x - m) / torch.sqrt(v + eps)
def _scatter_add(tgt, idx, src, axis=0):
    return tgt.clone().index_add_(axis, idx, src)
def _segment_sum(src, seg, n):
    out = torch.zeros((n,) + src.shape[1:], dtype=src.dtype)
    return out.index_add_(0, seg, src)
def _pad(x, pw):
    flat = tuple(v for pair in reversed(pw) for v in pair)
    return torch.nn.functional.pad(x, flat)

kernel_name = 'sequential_preLN__linear_attn_block__geglu_ffn__prompt'

def setup_inputs():

    _w = (lambda a: (lambda t: t.to(torch.bfloat16) if t.is_floating_point() else t)(torch.as_tensor(a)))
    def _A_setup():
        B, S, D = 1, 2048, 512
        return {
            "x": _w((lambda *s: torch.randn(*s, dtype=torch.bfloat16) * 0.05)(B, S, D)),
            "wqkv": _w((lambda *s: torch.randn(*s, dtype=torch.bfloat16) * 0.05)(D, 3 * D)),
            "wo": _w((lambda *s: torch.randn(*s, dtype=torch.bfloat16) * 0.05)(D, D)),
        }
    _A_in = _A_setup()

    def _B_setup():
        B, S, D, F = 1, 2048, 512, 1376
        return {
            "x": _w((lambda *s: torch.randn(*s, dtype=torch.bfloat16) * 0.05)(B, S, D)),
            "w_gate": _w((lambda *s: torch.randn(*s, dtype=torch.bfloat16) * 0.05)(D, F)),
            "w_up": _w((lambda *s: torch.randn(*s, dtype=torch.bfloat16) * 0.05)(D, F)),
            "w_down": _w((lambda *s: torch.randn(*s, dtype=torch.bfloat16) * 0.05)(F, D)),
        }
    _B_in = _B_setup()

    return {
        "A_x": _A_in["x"],
        "A_wqkv": _A_in["wqkv"],
        "A_wo": _A_in["wo"],
        "B_x": _B_in["x"],
        "B_w_gate": _B_in["w_gate"],
        "B_w_up": _B_in["w_up"],
        "B_w_down": _B_in["w_down"],
    }

def reference(A_x, A_wqkv, A_wo, B_x, B_w_gate, B_w_up, B_w_down):
    def _A_ref(x, wqkv, wo):
        B, S, D = x.shape
        H = 32; Dh = D // H
        qkv = (lambda x, *d: x.permute(*d))((x @ wqkv).reshape(B, S, 3, H, Dh), 2, 0, 3, 1, 4)
        q, k, v = qkv[0], qkv[1], qkv[2]
        phi = lambda t: torch.where(t > 0, t + 1, torch.exp(t)) + 1e-6
        pq, pk = phi(q), phi(k)
        kv = torch.einsum("bhsd,bhse->bhde", pk, v)
        z = torch.einsum("bhsd->bhd", pk)
        num = torch.einsum("bhqd,bhde->bhqe", pq, kv)
        den = torch.einsum("bhqd,bhd->bhq", pq, z)[..., None] + 1e-6
        o = num / den
        return (lambda x, *d: x.permute(*d))(o, 0, 2, 1, 3).reshape(B, S, D) @ wo

    def _B_ref(x, w_gate, w_up, w_down):
        return (_gelu(x @ w_gate) * (x @ w_up)) @ w_down

    x = A_x
    h = x + _A_ref(_layernorm(x, axis=-1), A_wqkv, A_wo)
    h2 = h + _B_ref(_layernorm(h, axis=-1), B_w_gate, B_w_up, B_w_down)
    return h2
```

```python
import re

REG_RE = re.compile(r'^(-|abs\()?([vas])(\d+)\)?$')
RNG_RE = re.compile(r'^(-)?([vas])\[(\d+):(\d+)\]$')
TRANS = ('v_exp_f32', 'v_log_f32', 'v_rcp_f32', 'v_rsq_f32', 'v_sqrt_f32', 'v_sin_f32', 'v_cos_f32')


def regs_of(tok):
    tok = tok.strip()
    m = REG_RE.match(tok)
    if m:
        return {(m.group(2), int(m.group(3)))}
    m = RNG_RE.match(tok)
    if m:
        return {(m.group(2), i) for i in range(int(m.group(3)), int(m.group(4)) + 1)}
    if tok in ('vcc',):
        return {('s', 'vcc_lo'), ('s', 'vcc_hi')}
    if tok in ('vcc_lo', 'vcc_hi'):
        return {('s', tok)}
    if tok == 'exec':
        return {('s', 'exec_lo'), ('s', 'exec_hi')}
    if tok in ('exec_lo', 'exec_hi', 'm0'):
        return {('s', tok)}
    return set()


class Ins:
    def __init__(self, text):
        self.text = text
        self.label = None
        self.kind = 'other'
        self.w = set()
        self.r = set()
        self.passes = 0
        self.A = self.B = self.C = set()
        self.states = 1
        self.target = None
        self.uncond = False
        self.is_lds_dma = False
        self.wide_store = set()
        t = text.split(';')[0].strip()
        if not t or t.startswith('.'):
            self.kind = 'dir'
            self.states = 0
            return
        if t.endswith(':'):
            self.label = t[:-1]
            self.kind = 'label'
            self.states = 0
            return
        parts = t.split(None, 1)
        op = parts[0]
        self.op = op
        rest = parts[1] if len(parts) > 1 else ''
        ops = [x.strip() for x in rest.split(',')] if rest else []
        mods = ''
        if ops:
            lp = ops[-1].split(None, 1)
            ops[-1] = lp[0]
            mods = lp[1] if len(lp) > 1 else ''
        self.mods = mods
        R = [regs_of(x) for x in ops]
        base = op.replace('_e32', '').replace('_e64', '').replace('_dpp', '')
        self.base = base
        if op.startswith('v_mfma'):
            self.kind = 'mfma'
            self.passes = 8 if '32x32' in op else 4
            self.w = R[0]
            self.A, self.B, self.C = R[1], R[2], R[3]
            self.r = R[1] | R[2] | R[3]
        elif op.startswith('v_'):
            self.kind = 'valu'
            self.trans = base in TRANS
            self.dpp = '_dpp' in op
            if base.startswith('v_permlane') and 'swap' in base:
                self.w = R[0] | R[1]
                self.r = R[0] | R[1]
            elif '_co_' in base:
                self.w = R[0] | R[1]
                self.r = set().union(*R[2:])
            else:
                self.w = R[0]
                self.r = set().union(*R[1:]) if len(R) > 1 else set()
                if base in ('v_fmac_f32', 'v_dot2c_f32_bf16', 'v_writelane_b32'):
                    self.r |= R[0]
                if base == 'v_cndmask_b32' and len(R) == 3:
                    self.r |= regs_of('vcc')
        elif op.startswith('ds_'):
            self.kind = 'ds'
            if op.startswith('ds_read') or op.startswith('ds_bpermute') or op.startswith('ds_swizzle'):
                self.w = R[0]
                self.r = set().union(*R[1:])
            else:
                self.r = set().union(*R)
        elif op.startswith('buffer_') or op.startswith('global_'):
            self.kind = 'vmem'
            m = mods.split()
            if 'lds' in m or '_lds_' in op:
                self.is_lds_dma = True
                self.r = set().union(*R) | {('s', 'm0')}
            elif '_load' in op:
                self.w = R[0]
                self.r = set().union(*R[1:])
            elif '_atomic' in op and 'sc0' in m:
                self.w = R[0]
                self.r = set().union(*R)
            else:
                self.r = set().union(*R)
                if 'dwordx4' in op or 'dwordx3' in op:
                    self.wide_store = R[0] if op.startswith('buffer_') else R[1]
        elif op.startswith('s_'):
            self.kind = 'salu'
            if op == 's_nop':
                self.states = int(ops[0], 0) + 1
            elif op.startswith('s_cbranch') or op == 's_branch':
                self.target = ops[0]
                self.uncond = op == 's_branch'
            elif op == 's_endpgm':
                self.uncond = True
            elif op.startswith('s_cmp') or op in ('s_waitcnt', 's_barrier', 's_sleep', 's_setprio'):
                self.r = set().union(*R) if R else set()
            elif op.startswith('s_load') or op.startswith('s_mem'):
                self.kind = 'smem'
                self.w = R[0]
                self.r = set().union(*R[1:]) if len(R) > 1 else set()
            else:
                self.w = R[0]
                self.r = set().union(*R[1:]) if len(R) > 1 else set()
                if 'saveexec' in op:
                    self.w |= regs_of('exec')


def need(p, c):
    n = 0
    pv = {x for x in p.w if x[0] in 'va'}
    ps = {x for x in p.w if x[0] == 's'}
    if p.kind == 'valu':
        if c.kind == 'mfma' and pv & c.r:
            n = max(n, 2)
        if c.kind == 'valu':
            if p.trans and not c.trans and pv & c.r:
                n = max(n, 1)
            if c.base.startswith('v_permlane') and pv & c.r:
                n = max(n, 2)
            if c.dpp and pv & c.r:
                n = max(n, 2)
            if c.base in ('v_readfirstlane_b32', 'v_readlane_b32') and pv & c.r:
                n = max(n, 1)
            if ps & c.r:
                n = max(n, 4 if c.base in ('v_readlane_b32', 'v_writelane_b32') else 2)
        if c.kind == 'mfma' and ps & {('s', 'exec_lo'), ('s', 'exec_hi')}:
            n = max(n, 4)
        if c.kind == 'vmem' and ps & c.r:
            n = max(n, 5)
    if p.kind == 'mfma':
        big = 12 if p.passes == 8 else 8
        if c.kind == 'valu' and pv & (c.r | c.w):
            n = max(n, big)
        if c.kind in ('ds', 'vmem') and pv & (c.r | c.w):
            n = max(n, big)
        if c.kind == 'mfma':
            if pv & (c.A | c.B):
                n = max(n, big)
            if pv & c.C and not (c.C == pv and c.passes == p.passes):
                n = max(n, big - 2)
            if pv & c.w and not (pv & c.C) :
                if not (c.w == pv and c.passes == p.passes):
                    n = max(n, big - 2)
        if c.kind == 'valu' and p.C & c.w:
            n = max(n, 7 if p.passes == 8 else 3)
    if p.kind == 'salu' and ('s', 'm0') in p.w and c.kind == 'vmem' and c.is_lds_dma:
        n = max(n, 1)
    if p.kind == 'vmem' and p.wide_store:
        if c.kind == 'valu' and p.wide_store & c.w:
            n = max(n, 2)
        elif c.kind in ('mfma', 'ds', 'vmem') and p.wide_store & c.w:
            n = max(n, 1)
    return n


class K:
    def __init__(self):
        self.L = []
        self.vm = []
        self.lg = []
        self.errors = []
        self.nlab = 0
        self.optional = False

    def e(self, text, tag=None):
        for line in text.split('\n'):
            line = line.strip()
            if not line or line.startswith(';'):
                continue
            i = Ins(line)
            self._check_pending(i)
            self.L.append(i)
            if i.kind == 'vmem':
                self.vm.append((tag, set(i.w), self.optional))
            elif i.kind == 'ds':
                self.lg.append((tag, set(i.w), self.optional))
            elif i.kind == 'salu' and i.op == 's_waitcnt':
                t = line
                m = re.search(r'vmcnt\((\d+)\)', t)
                if m:
                    self._retire(self.vm, int(m.group(1)))
                m = re.search(r'lgkmcnt\((\d+)\)', t)
                if m:
                    self._retire(self.lg, int(m.group(1)))

    def _retire(self, q, n):
        if self.optional:
            if n == 0:
                q[:] = [it for it in q if not it[2]]
            return
        keep = []
        cnt = 0
        for it in reversed(q):
            if cnt >= n:
                break
            keep.append(it)
            if not it[2]:
                cnt += 1
        q[:] = list(reversed(keep))

    def _check_pending(self, i):
        if i.kind in ('dir', 'label'):
            return
        touched = {x for x in (i.r | i.w) if x[0] in 'va'}
        for q, nm in ((self.vm, 'vm'), (self.lg, 'lgkm')):
            for tag, d, _ in q:
                if d & touched:
                    self.errors.append(f"pending {nm} load (tag {tag}) dst touched by: {i.text}")

    def _count_after(self, q, tags):
        if not isinstance(tags, (list, tuple, set)):
            tags = [tags]
        last = -1
        for idx, it in enumerate(q):
            if it[0] in tags:
                last = idx
        if last < 0:
            return None
        return sum(1 for it in q[last + 1:] if not it[2])

    def wait(self, vm=None, lg=None):
        s = []
        if vm is not None:
            n = 0 if vm == 'all' else self._count_after(self.vm, vm)
            if n is not None and (vm != 'all' or self.vm):
                s.append(f"vmcnt({min(n, 63)})")
        if lg is not None:
            n = 0 if lg == 'all' else self._count_after(self.lg, lg)
            if n is not None and (lg != 'all' or self.lg):
                s.append(f"lgkmcnt({min(n, 15)})")
        if s:
            self.e("s_waitcnt " + " ".join(s))

    def lab(self, name):
        self.nlab += 1
        return f"L_{name}_{self.nlab}"

    def fix_hazards(self, verbose=False):
        inserted = 0
        changed = True
        while changed:
            changed = False
            L = self.L
            labels = {x.label: k for k, x in enumerate(L) if x.label}
            preds = {k: [] for k in range(len(L))}
            for k, x in enumerate(L):
                if k + 1 < len(L) and not x.uncond:
                    preds[k + 1].append(k)
                if x.target is not None and x.target in labels:
                    preds[labels[x.target]].append(k)
            for k, c in enumerate(L):
                if c.kind in ('dir', 'label'):
                    continue
                worst = 0
                stack = [(p, 0) for p in preds[k]]
                seen = {}
                while stack:
                    p, d = stack.pop()
                    if d >= 13 or seen.get(p, 99) <= d:
                        continue
                    seen[p] = d
                    x = L[p]
                    if x.kind not in ('dir', 'label'):
                        n = need(x, c)
                        if n - d > worst:
                            worst = n - d
                            why = x.text
                    for pp in preds[p]:
                        stack.append((pp, d + x.states))
                if worst > 0:
                    if verbose:
                        print(f"hazard: +{worst} before [{c.text}] after [{why}]")
                    L.insert(k, Ins(f"s_nop {worst - 1}"))
                    inserted += worst
                    changed = True
                    break
        return inserted

    def text(self):
        out = []
        for x in self.L:
            out.append(x.text if x.kind in ('label', 'dir') else "    " + x.text)
        return "\n".join(out) + "\n"


def interleave(k, mf, fill, per=2, lead=0):
    fi = 0
    def put(f):
        if callable(f):
            f()
        elif isinstance(f, tuple):
            k.e(f[0], tag=f[1])
        else:
            k.e(f)
    for _ in range(lead):
        if fi < len(fill):
            put(fill[fi]); fi += 1
    for m in mf:
        put(m)
        for _ in range(per):
            if fi < len(fill):
                put(fill[fi]); fi += 1
    while fi < len(fill):
        put(fill[fi]); fi += 1
```

```python
import sys, math
sys.path.insert(0, "exp")
from asmlib import K, interleave

NAME = "sequential_preLN__linear_attn_block__geglu_ffn__prompt_kernel"

KV_OFF = 0
CS_OFF = 36864
CNT = 49152
NZ = 19
ST_OFF = 0x20000
PQ_OFF = 0x100000
HP_OFF = 0x300000
W3_OFF = 0x500000
WD_OFF = 0x7C0000
GP_OFF = 0x920000
WS_SIZE = 0x1000000
STAMP_OFF = 0xF00000
C_KV, C_RP, C_PQ, C_H, C_G = 0, 64, 128, 160, 192

LX, LR, LS, LM = 0, 65536, 131072, 147456
LDS_BYTES = 163840

LOG2E = 1.4426950408889634
import struct
def f2u(x):
    return "0x%08x" % struct.unpack("<I", struct.pack("<f", x))[0]

sX, sWQ, sWS, sWO, sWG, sWU, sWD, sOUT, sDBG = 24, 28, 32, 36, 40, 44, 48, 52, 56
def srd(n): return f"s[{n}:{n+3}]"
S = dict(w=60, x=61, j=62, rb1=63, g=64, rot=65, rb2=66, ct=67, B=68, c=69, xb=70, wb=71, t0=72, t1=73, t2=74, t3=75,
         mx=76, mw=77, hd=78, st3=79, sz3=80, xp=81, it=82, u=83, t4=84, t5=85, res=86, s0=87, s1=88, s2=89, s3=90, rt=91,
         stamp=92)
for _k, _v in list(S.items()):
    S[_k] = f"s{_v}"


def gen(debug=False, stop_after=None):
    k = K()
    e = k.e
    nst = [0]
    def stamp():
        if not debug:
            return
        e(f"s_memrealtime s[10:11]")
        e("s_waitcnt lgkmcnt(0)")
        e(f"s_mov_b32 s{92 + nst[0]}, s10")
        nst[0] += 1

    def setexec(n):
        m = (1 << n) - 1
        if n <= 6:
            e(f"s_mov_b64 exec, {m}")
        elif n == 64:
            e("s_mov_b64 exec, -1")
        else:
            e(f"s_mov_b32 exec_lo, {hex(m & 0xffffffff)}")
            e(f"s_mov_b32 exec_hi, {hex(m >> 32)}")

    def wave0(body):
        l = k.lab("w0")
        e(f"s_cmp_lg_u32 {S['w']}, 0")
        e(f"s_cbranch_scc1 {l}")
        k.optional = True
        body()
        k.optional = False
        e(f"{l}:")

    def poll(voff, soff, nl, expect, vtmp, srdn=sWS, presleep=0, sleep=2):
        l = k.lab("poll")
        setexec(nl)
        e(f"s_mov_b32 {S['it']}, 0")
        if presleep:
            e(f"s_sleep {presleep}")
        e(f"{l}:")
        e(f"buffer_load_dword {vtmp}, {voff}, {srd(srdn)}, {soff} offen sc1")
        e(f"s_add_u32 {S['it']}, {S['it']}, 1")
        e(f"s_cmp_gt_u32 {S['it']}, 0x40000")
        e("s_cbranch_scc1 L_end")
        e("s_waitcnt vmcnt(0)")
        e(f"v_cmp_gt_u32 vcc, {expect}, {vtmp}")
        l2 = k.lab("pok")
        e(f"s_cbranch_vccz {l2}")
        if sleep:
            e(f"s_sleep {sleep}")
        e(f"s_branch {l}")
        e(f"{l2}:")
        setexec(64)

    e("s_cmp_ge_u32 s2, 256")
    e("s_cbranch_scc1 L_end")
    e("s_load_dwordx16 s[4:19], s[0:1], 0")
    e("s_load_dwordx4 s[20:23], s[0:1], 64")
    vL, vT0, vT1, vT2, vT3 = "v1", "v2", "v3", "v4", "v5"
    vXs = ["v6", "v7"]
    vWs = ["v8", "v9", "v10", "v11"]
    vXa = [["v12", "v13", "v14", "v15"], ["v16", "v17", "v18", "v19"]]
    vWa = "v20"
    vL16 = "v21"
    vL4 = "v22"
    vOne = "v23"
    e(f"v_lshrrev_b32 {vT0}, 6, v0")
    e(f"v_and_b32 {vL}, 63, v0")
    e(f"v_readfirstlane_b32 {S['w']}, {vT0}")
    e(f"s_and_b32 {S['x']}, s2, 7")
    e(f"s_lshr_b32 {S['j']}, s2, 3")
    e(f"s_and_b32 {S['t0']}, {S['j']}, 7")
    e(f"s_lshr_b32 {S['t1']}, {S['j']}, 3")
    e(f"s_lshr_b32 {S['t2']}, {S['x']}, 1")
    e(f"s_and_b32 {S['xp']}, {S['x']}, 1")
    e(f"s_lshl3_add_u32 {S['rb1']}, {S['t2']}, {S['t0']}")
    e(f"s_lshl2_add_u32 {S['g']}, {S['xp']}, {S['t1']}")
    e(f"s_lshl1_add_u32 {S['rot']}, {S['t1']}, {S['t0']}")
    e(f"s_and_b32 {S['rot']}, {S['rot']}, 7")
    e(f"v_lshrrev_b32 {vT0}, 3, {vL}")
    e(f"v_and_b32 {vT1}, 7, {vL}")
    e(f"v_and_b32 {vT2}, 6, {vT0}")
    e(f"v_xor_b32 {vT2}, {vT2}, {vT1}")
    e(f"v_lshlrev_b32 {vT2}, 4, {vT2}")
    e(f"v_lshl_add_u32 {vXs[0]}, {vT0}, 10, {vT2}")
    e(f"v_add_u32 {vXs[1]}, 7168, {vXs[0]}")
    e(f"s_and_b32 {S['t3']}, {S['w']}, 1")
    e(f"s_lshl_b32 {S['t3']}, {S['t3']}, 2")
    e(f"v_and_b32 {vT2}, 2, {vT0}")
    e(f"v_or_b32 {vT2}, {S['t3']}, {vT2}")
    e(f"v_xor_b32 {vT2}, {vT2}, {vT1}")
    e(f"v_lshlrev_b32 {vT2}, 4, {vT2}")
    e(f"v_mul_u32_u24 {vT3}, 3072, {vT0}")
    e(f"v_add_u32 {vWs[2]}, {vT3}, {vT2}")
    e(f"v_add_u32 {vWs[0]}, 1024, {vWs[2]}")
    e(f"v_add_u32 {vWs[1]}, 98304, {vWs[2]}")
    e(f"v_add_u32 {vWs[3]}, 97280, {vWs[2]}")
    e(f"s_lshl2_add_u32 {S['xb']}, {S['rb1']}, {S['w']}")
    e(f"s_lshl_b32 {S['xb']}, {S['xb']}, 14")
    e(f"s_mul_i32 {S['wb']}, {S['w']}, 24576")
    e(f"s_lshl_b32 {S['t3']}, {S['g']}, 7")
    e(f"s_add_u32 {S['wb']}, {S['wb']}, {S['t3']}")
    e(f"s_lshl_b32 {S['mx']}, {S['w']}, 11")
    e(f"s_lshl_b32 {S['mw']}, {S['w']}, 12")
    e(f"s_add_u32 {S['mw']}, {S['mw']}, {LR}")
    e(f"s_mov_b32 s{sX+2}, {2048*1024}")
    e(f"s_mov_b32 s{sX+3}, 0x20000")
    e(f"s_mov_b32 s{sWQ+2}, {512*3072}")
    e(f"s_mov_b32 s{sWQ+3}, 0x20000")
    e(f"s_mov_b32 s{sWS+2}, {WS_SIZE}")
    e(f"s_mov_b32 s{sWS+3}, 0x20000")
    e("s_waitcnt lgkmcnt(0)")
    e(f"s_mov_b64 s[{sX}:{sX+1}], s[4:5]")
    e(f"s_mov_b64 s[{sWQ}:{sWQ+1}], s[6:7]")
    e(f"s_mov_b64 s[{sWS}:{sWS+1}], s[22:23]")
    stamp()

    def kc_of(s):
        e(f"s_add_u32 {S['t0']}, {S['rot']}, {s}")
        e(f"s_and_b32 {S['t0']}, {S['t0']}, 7")

    def dma_x(s, have_kc=False):
        if not have_kc:
            kc_of(s)
        e(f"s_lshl_b32 {S['t1']}, {S['t0']}, 7")
        e(f"s_add_u32 {S['t1']}, {S['t1']}, {S['xb']}")
        e(f"s_add_u32 m0, {S['mx']}, {LX + s*8192}")
        e(f"buffer_load_dwordx4 {vXs[0]}, {srd(sX)}, {S['t1']} offen lds", tag=f"x{s}")
        e(f"buffer_load_dwordx4 {vXs[1]}, {srd(sX)}, {S['t1']} offen offset:1024 lds", tag=f"x{s}")

    def dma_wkv(s, have_kc=False):
        if not have_kc:
            kc_of(s)
        e(f"s_mul_i32 {S['t1']}, {S['t0']}, 196608")
        e(f"s_add_u32 {S['t1']}, {S['t1']}, {S['wb']}")
        e(f"s_add_u32 m0, {S['mw']}, {(s % 4)*16384}")
        for i in range(4):
            e(f"buffer_load_dwordx4 {vWs[i]}, {srd(sWQ)}, {S['t1']} offen offset:{i*1024} lds", tag=f"w{s}")

    def dma_wq(p):
        for h in range(2):
            kc_of(2*p + h)
            e(f"s_mul_i32 {S['t1']}, {S['t0']}, 196608")
            e(f"s_add_u32 {S['t1']}, {S['t1']}, {S['wb']}")
            e(f"s_add_u32 m0, {S['mw']}, {p*16384 + h*2048}")
            e(f"buffer_load_dwordx4 {vWs[2]}, {srd(sWQ)}, {S['t1']} offen lds", tag=f"q{p}")
            e(f"buffer_load_dwordx4 {vWs[3]}, {srd(sWQ)}, {S['t1']} offen offset:1024 lds", tag=f"q{p}")

    e(f"v_lshlrev_b32 {vL16}, 4, {vL}")
    lz = k.lab("nz")
    e(f"s_cmp_ge_u32 s2, {NZ}")
    e(f"s_cbranch_scc1 {lz}")
    k.optional = True
    e("v_mov_b32 v24, 0\nv_mov_b32 v25, 0\nv_mov_b32 v26, 0\nv_mov_b32 v27, 0")
    e(f"v_lshlrev_b32 v28, 4, v0")
    e(f"s_lshl_b32 {S['t1']}, s2, 12")
    e(f"buffer_store_dwordx4 v[24:27], v28, {srd(sWS)}, {S['t1']} offen sc1")
    k.optional = False
    e(f"{lz}:")
    for s in range(4):
        dma_x(s)
        dma_wkv(s, True)
        if s == 0:
            e(f"s_getpc_b64 s[10:11]")
            e("L_pc:")
            e(f"s_lshl_b32 {S['t1']}, {S['j']}, 10")
            e(f"v_lshlrev_b32 v28, 7, {vL}")
            e(f"v_add_u32 v28, {S['t1']}, v28")
            e(f"v_min_u32 v28, L_end-L_pc, v28")
            lp = k.lab("npf")
            e(f"s_cmp_lg_u32 {S['w']}, 3")
            e(f"s_cbranch_scc1 {lp}")
            k.optional = True
            setexec(8)
            e(f"global_load_dword v29, v28, s[10:11]")
            setexec(64)
            k.optional = False
            e(f"{lp}:")
    for s in range(4, 8):
        dma_x(s)
    for n, p, sz in ((sWO, 8, 512*1024), (sWG, 12, 512*2752), (sWU, 14, 512*2752), (sWD, 16, 1376*1024),
                     (sOUT, 18, 2048*1024), (sDBG, 20, 256)):
        e(f"s_mov_b64 s[{n}:{n+1}], s[{p}:{p+1}]")
        e(f"s_mov_b32 s{n+2}, {sz}")
        e(f"s_mov_b32 s{n+3}, 0x20000")
    e(f"s_and_b32 {S['t0']}, {S['j']}, 3")
    e(f"s_lshr_b32 {S['ct']}, {S['j']}, 2")
    e(f"s_lshl2_add_u32 {S['rb2']}, {S['x']}, {S['t0']}")
    e(f"s_lshr_b32 {S['t2']}, {S['x']}, 1")
    e(f"s_lshl2_add_u32 {S['B']}, {S['t2']}, {S['t0']}")
    e(f"s_lshl3_add_u32 {S['c']}, {S['xp']}, {S['ct']}")
    e(f"s_lshl2_add_u32 {S['hd']}, {S['g']}, {S['w']}")
    e(f"v_lshlrev_b32 {vL4}, 2, {vL}")
    e(f"v_mov_b32 {vOne}, 1")
    e(f"v_and_b32 {vT0}, 7, {vL}")
    e(f"v_bfe_u32 {vT1}, {vL}, 3, 1")
    e(f"v_lshlrev_b32 {vT1}, 10, {vT1}")
    e(f"v_lshl_add_u32 {vT1}, {vT0}, 7, {vT1}")
    e(f"v_lshrrev_b32 {vT2}, 4, {vL}")
    e(f"v_and_b32 {vT0}, 6, {vT0}")
    e(f"v_xor_b32 {vT0}, {vT0}, {vT2}")
    e(f"v_lshl_add_u32 {vT1}, {vT0}, 4, {vT1}")
    e(f"v_add_u32 {vT1}, {S['mx']}, {vT1}")
    for i in range(4):
        e(f"v_xor_b32 {vXa[0][i]}, {i*2048}, {vT1}")
        e(f"v_xor_b32 {vXa[1][i]}, {i*2048 + 64}, {vT1}")
    e(f"v_bfe_u32 {vT0}, {vL}, 2, 2")
    e(f"v_and_b32 {vT1}, 2, {vT0}")
    e(f"v_and_b32 {vT3}, 1, {vT2}")
    e(f"v_lshl_or_b32 {vT1}, {vT3}, 2, {vT1}")
    e(f"v_bfe_u32 {vT3}, {vL}, 1, 1")
    e(f"s_lshl_b32 {S['t0']}, {S['w']}, 1")
    e(f"v_or_b32 {vT3}, {S['t0']}, {vT3}")
    e(f"v_xor_b32 {vT1}, {vT1}, {vT3}")
    e(f"v_lshlrev_b32 {vT1}, 4, {vT1}")
    e(f"v_lshl_add_u32 {vT1}, {vT0}, 7, {vT1}")
    e(f"v_lshl_add_u32 {vT1}, {vT2}, 12, {vT1}")
    e(f"v_and_b32 {vT3}, 1, {vL}")
    e(f"v_lshl_add_u32 {vT1}, {vT3}, 3, {vT1}")
    e(f"v_add_u32 {vWa}, {LR}, {vT1}")

    ONE = 24
    XF = [[28 + 16*b + 4*i for i in range(4)] for b in range(2)]
    WF = [[60 + 8*b + 4*m for m in range(2)] for b in range(2)]
    AK = [76 + 4*i for i in range(4)]
    AV = [92 + 4*i for i in range(4)]
    AQ = [108 + 4*i for i in range(4)]
    CK, CV, CQ, S1, GR = 124, 128, 132, 136, 140
    MEAN = [144 + 4*i for i in range(4)]
    RSTD = [160 + 4*i for i in range(4)]
    MQ, RQ = 176, 180
    vZF = "v184"
    def q4(n): return f"v[{n}:{n+3}]"
    for i in range(4):
        e(f"v_mov_b32 v{ONE+i}, 0x3f803f80")

    def rd_x(s, ks, b):
        return [(f"ds_read_b128 {q4(XF[b][i])}, {vXa[ks][i]} offset:{s*8192}", f"f{b}") for i in range(4)]
    def rd_w(slot, mat, ks, b, m):
        o = slot*16384 + mat*2048 + ks*1024
        r = WF[b][m]
        return [(f"ds_read_b64_tr_b16 v[{r}:{r+1}], {vWa} offset:{o}", f"f{b}"),
                (f"ds_read_b64_tr_b16 v[{r+2}:{r+3}], {vWa} offset:{o+512}", f"f{b}")]
    def mf16(d, a, b, first):
        return f"v_mfma_f32_16x16x32_bf16 {q4(d)}, {q4(a)}, {q4(b)}, {'0' if first else q4(d)}"

    def kv_mfmas(b, first):
        m = []
        for i in range(4):
            m.append(mf16(AK[i], XF[b][i], WF[b][0], first))
            m.append(mf16(AV[i], XF[b][i], WF[b][1], first))
        m.append(mf16(CK, ONE, WF[b][0], first))
        m.append(mf16(CV, ONE, WF[b][1], first))
        m.append(mf16(S1, XF[b][0], ONE, first))
        m.append(mf16(GR, XF[b][0], XF[b][0], first))
        return m
    def q_mfmas(b, first):
        m = [mf16(AQ[i], WF[b][0], XF[b][i], first) for i in range(4)]
        m.append(mf16(CQ, WF[b][0], ONE, first))
        return m

    k.wait(vm=["x0", "w0"])
    e("s_barrier")
    lz = k.lab("nz2")
    e(f"s_cmp_ge_u32 s2, {NZ}")
    e(f"s_cbranch_scc1 {lz}")
    def ann():
        setexec(1)
        e(f"buffer_atomic_add {vOne}, {vL4}, {srd(sDBG)}, 0 offen sc1")
        setexec(64)
    wave0(ann)
    e(f"{lz}:")
    stamp()
    for x in rd_w(0, 0, 0, 0, 0) + rd_w(0, 1, 0, 0, 1) + rd_x(0, 0, 0):
        e(x[0], tag=x[1])
    for s in range(8):
        slot = s % 4
        k.wait(lg="f0")
        interleave(k, kv_mfmas(0, s == 0), rd_w(slot, 0, 1, 1, 0) + rd_w(slot, 1, 1, 1, 1) + rd_x(s, 1, 1), per=1)
        nxt = [f"x{s+1}", f"w{s+1}"] if s < 7 else ["q0"]
        k.wait(vm=nxt, lg="all")
        e("s_barrier")
        if s < 7:
            fill = rd_w((s+1) % 4, 0, 0, 0, 0) + rd_w((s+1) % 4, 1, 0, 0, 1) + rd_x(s+1, 0, 0)
        else:
            fill = rd_w(0, 0, 0, 0, 0) + rd_x(0, 0, 0)
        if s < 4:
            fill.append(lambda s=s: dma_wkv(s + 4))
        else:
            fill.append(lambda s=s: dma_wq(s - 4))
        if s == 6:
            fill.append((f"buffer_load_dword {vZF}, off, {srd(sDBG)}, 0 sc1", "zf"))
        interleave(k, kv_mfmas(1, False), fill, per=1)
    vRs = ["v186", "v187", "v188", "v189"]
    def repack_loads():
        lw = k.lab("rpwd"); ld = k.lab("rpd")
        e(f"s_lshl_b32 {S['t2']}, {S['w']}, 12")
        e(f"s_add_u32 m0, {S['t2']}, {LS}")
        e(f"s_cmp_ge_u32 {S['u']}, 176")
        e(f"s_cbranch_scc1 {lw}")
        k.optional = True
        e(f"s_and_b32 {S['t0']}, {S['u']}, 7")
        e(f"s_lshl2_add_u32 {S['t0']}, {S['t0']}, {S['w']}")
        e(f"s_mul_i32 {S['t0']}, {S['t0']}, {16*2752}")
        e(f"s_lshr_b32 {S['t1']}, {S['u']}, 3")
        e(f"s_lshl_b32 {S['t1']}, {S['t1']}, 7")
        e(f"s_add_u32 {S['t0']}, {S['t0']}, {S['t1']}")
        e(f"v_lshrrev_b32 {vT0}, 3, {vL}")
        e(f"v_and_b32 {vT1}, 7, {vL}")
        e(f"v_mul_u32_u24 {vT0}, 2752, {vT0}")
        e(f"v_lshl_add_u32 {vRs[0]}, {vT1}, 4, {vT0}")
        e(f"v_add_u32 {vRs[1]}, {8*2752 - 1024}, {vRs[0]}")
        e(f"buffer_load_dwordx4 {vRs[0]}, {srd(sWG)}, {S['t0']} offen lds")
        e(f"buffer_load_dwordx4 {vRs[1]}, {srd(sWG)}, {S['t0']} offen offset:1024 lds")
        e(f"s_add_u32 m0, m0, 2048")
        e(f"s_nop 0")
        e(f"buffer_load_dwordx4 {vRs[0]}, {srd(sWU)}, {S['t0']} offen lds")
        e(f"buffer_load_dwordx4 {vRs[1]}, {srd(sWU)}, {S['t0']} offen offset:1024 lds")
        e(f"s_branch {ld}")
        e(f"{lw}:")
        e(f"s_sub_u32 {S['t0']}, {S['u']}, 176")
        e(f"s_lshl_b32 {S['t0']}, {S['t0']}, 14")
        e(f"s_add_u32 {S['t0']}, {S['t0']}, {S['t2']}")
        k.optional = False
        for i in range(4):
            e(f"buffer_load_dwordx4 {vL16}, {srd(sWD)}, {S['t0']} offen offset:{i*1024} lds", tag="rp")
        e(f"{ld}:")
    e(f"s_mov_b32 {S['u']}, s2")
    repack_loads()
    stamp()

    e(f"v_and_b32 {vT0}, 3, {vL}")
    e(f"v_cmp_eq_u32 vcc, 1, {vT0}")
    e(f"v_cndmask_b32 v{S1}, v{S1}, v{S1+1}, vcc")
    e(f"v_cndmask_b32 v{GR}, v{GR}, v{GR+1}, vcc")
    e(f"v_cmp_eq_u32 vcc, 2, {vT0}")
    e(f"v_cndmask_b32 v{S1}, v{S1}, v{S1+2}, vcc")
    e(f"v_cndmask_b32 v{GR}, v{GR}, v{GR+2}, vcc")
    e(f"v_cmp_eq_u32 vcc, 3, {vT0}")
    e(f"v_cndmask_b32 v{S1}, v{S1}, v{S1+3}, vcc")
    e(f"v_cndmask_b32 v{GR}, v{GR}, v{GR+3}, vcc")
    e(f"v_mul_f32 v{S1}, {f2u(1/512)}, v{S1}")
    e(f"v_mul_f32 v{S1+1}, v{S1}, v{S1}")
    e(f"v_fma_f32 v{S1+1}, -v{S1+1}, 1.0, 0")
    e(f"v_fmamk_f32 v{GR}, v{GR}, {f2u(1/512)}, v{S1+1}")
    e(f"v_max_f32 v{GR}, 0, v{GR}")
    e(f"v_add_f32 v{GR}, {f2u(1e-5)}, v{GR}")
    e(f"v_rsq_f32 v{GR}, v{GR}")
    e(f"v_and_b32 {vT0}, 15, {vL}")
    e(f"s_lshl_b32 {S['t0']}, {S['w']}, 6")
    e(f"s_add_u32 {S['t0']}, {S['t0']}, {LM}")
    e(f"v_lshl_add_u32 {vT1}, {vT0}, 2, {S['t0']}")
    e("s_mov_b32 exec_lo, 0x00f0000f")
    e("s_mov_b32 exec_hi, 0xf0000f00")
    e(f"ds_write_b32 {vT1}, v{S1}", tag="sw")
    e(f"ds_write_b32 {vT1}, v{GR} offset:256", tag="sw")
    e("s_mov_b64 exec, -1")
    k.wait(vm="zf")
    e(f"v_readfirstlane_b32 {S['t1']}, {vZF}")
    lok = k.lab("zok")
    e(f"s_cmp_ge_u32 {S['t1']}, {NZ}")
    e(f"s_cbranch_scc1 {lok}")
    k.optional = True
    e(f"v_mov_b32 {vT3}, 0")
    poll(vT3, "0", 1, NZ, vZF, srdn=sDBG)
    k.optional = False
    e(f"{lok}:")
    k.wait(lg="sw")
    e("s_barrier")
    e(f"v_lshrrev_b32 {vT2}, 4, {vL}")
    e(f"v_lshl_add_u32 {vT2}, {vT2}, 4, {S['t0']}")
    for i in range(4):
        e(f"v_xor_b32 {vT3}, {i*64}, {vT2}")
        e(f"ds_read_b128 {q4(MEAN[i])}, {vT3}", tag="st")
        e(f"ds_read_b128 {q4(RSTD[i])}, {vT3} offset:256", tag="st")
    for i in range(4):
        e(f"v_xor_b32 {vT3}, {i*64}, {vT1}")
        e(f"ds_read_b32 v{MQ+i}, {vT3}", tag="st2")
        e(f"ds_read_b32 v{RQ+i}, {vT3} offset:256", tag="st2")
    e(f"s_mov_b32 {S['t4']}, {f2u(LOG2E)}")
    e(f"s_mov_b32 {S['t5']}, {f2u(1e-6)}")

    def phi_ops(acc, mean, rstd, cs, tmp):
        return [f"v_fma_f32 v{acc}, -v{mean}, v{cs}, v{acc}",
                f"v_fmaak_f32 v{acc}, v{acc}, v{rstd}, {f2u(1e-6)}",
                f"v_mul_f32 v{tmp}, {S['t4']}, v{acc}",
                f"v_max_f32 v{acc}, {S['t5']}, v{acc}",
                f"v_exp_f32_e64 v{tmp}, v{tmp} clamp",
                None,
                f"v_add_f32 v{acc}, v{acc}, v{tmp}"]
    def emit_grouped(groups):
        n = len(groups[0])
        for j in range(n):
            for gp in groups:
                if gp[j]:
                    e(gp[j])

    k.wait(lg="st")
    TMP = 190
    for i in range(4):
        emit_grouped([phi_ops(AK[i] + r, MEAN[i] + r, RSTD[i] + r, CK, TMP + r) for r in range(4)])
        for r in range(4):
            e(f"v_fma_f32 v{AV[i]+r}, -v{MEAN[i]+r}, v{CV}, v{AV[i]+r}")
        for r in range(4):
            e(f"v_mul_f32 v{AV[i]+r}, v{AV[i]+r}, v{RSTD[i]+r}")
    PK, PV = 208, 216
    for i in range(4):
        for h in range(2):
            e(f"v_cvt_pk_bf16_f32 v{PK + 2*i + h}, v{AK[i] + 2*h}, v{AK[i] + 2*h + 1}")
            e(f"v_cvt_pk_bf16_f32 v{PV + 2*i + h}, v{AV[i] + 2*h}, v{AV[i] + 2*h + 1}")
    KVT, ZZ = 224, 228
    e(mf16(KVT, PV, PK, True))
    e(mf16(ZZ, ONE, PK, True))
    e(mf16(KVT, PV + 4, PK + 4, False))
    e(mf16(ZZ, ONE, PK + 4, False))
    e(f"s_mul_i32 {S['t0']}, {S['hd']}, 1152")
    def kv_atomics():
        for r in range(4):
            e(f"buffer_atomic_add_f32 v{KVT+r}, {vL4}, {srd(sWS)}, {S['t0']} offen offset:{r*256}", tag="at")
        setexec(16)
        e(f"buffer_atomic_add_f32 v{ZZ}, {vL4}, {srd(sWS)}, {S['t0']} offen offset:1024", tag="at")
        setexec(64)
    kv_atomics()
    stamp()

    for s in range(8):
        p, h = s // 2, s % 2
        k.wait(lg="f0")
        interleave(k, q_mfmas(0, s == 0), rd_w(p, h, 1, 1, 0) + rd_x(s, 1, 1), per=2)
        if s < 7:
            if h == 1:
                k.wait(vm=f"q{p+1}", lg="all")
                e("s_barrier")
            else:
                k.wait(lg="f1")
            p2, h2 = (s+1) // 2, (s+1) % 2
            fill = rd_w(p2, h2, 0, 0, 0) + rd_x(s+1, 0, 0)
        else:
            k.wait(lg="all")
            e("s_barrier")
            fill = []
        interleave(k, q_mfmas(1, False), fill, per=2)
    vPQs = "v185"
    e(f"v_lshrrev_b32 {vT0}, 4, {vL}")
    e(f"v_xor_b32 {vT1}, {S['w']}, {vT0}")
    e(f"v_and_b32 {vT1}, 1, {vT1}")
    e(f"v_and_b32 {vT2}, 15, {vL}")
    e(f"v_lshl_add_u32 {vT1}, {vT1}, 4, {vT2}")
    e(f"v_lshlrev_b32 {vT1}, 5, {vT1}")
    e(f"v_lshrrev_b32 {vT0}, 5, {vL}")
    e(f"v_lshl_add_u32 {vPQs}, {vT0}, 4, {vT1}")
    e(f"s_lshr_b32 {S['t0']}, {S['w']}, 1")
    e(f"s_lshl1_add_u32 {S['t0']}, {S['rb1']}, {S['t0']}")
    e(f"s_lshl_b32 {S['t0']}, {S['t0']}, 5")
    e(f"s_add_u32 {S['t0']}, {S['t0']}, {S['hd']}")
    e(f"s_lshl_b32 {S['t0']}, {S['t0']}, 10")
    e(f"s_add_u32 {S['t0']}, {S['t0']}, {PQ_OFF}")
    e(f"s_xor_b32 {S['t1']}, {S['t0']}, {32*1024}")
    for pr in range(2):
        emit_grouped([phi_ops(AQ[i] + r, MQ + i, RQ + i, CQ + r, TMP + 4*(i & 1) + r) for i in (2*pr, 2*pr+1) for r in range(4)])
        o = PK + 4*pr
        for ii in range(2):
            for h in range(2):
                e(f"v_cvt_pk_bf16_f32 v{o + 2*ii + h}, v{AQ[2*pr+ii] + 2*h}, v{AQ[2*pr+ii] + 2*h + 1}")
        e(f"v_permlane16_swap_b32 v{o}, v{o+2}")
        e(f"v_permlane16_swap_b32 v{o+1}, v{o+3}")
        e(f"buffer_store_dwordx4 {q4(o)}, {vPQs}, {srd(sWS)}, {S['t0'] if pr == 0 else S['t1']} offen sc1", tag="pqs")
    vWo = ["v186", "v187", "v188", "v189"]
    e(f"v_lshrrev_b32 {vT0}, 3, {vL}")
    e(f"v_and_b32 {vT1}, 7, {vL}")
    e(f"v_and_b32 {vT2}, 2, {vT0}")
    e(f"v_lshlrev_b32 {vT2}, 1, {vT2}")
    e(f"v_xor_b32 {vT1}, {vT1}, {vT2}")
    e(f"v_lshlrev_b32 {vT1}, 4, {vT1}")
    e(f"v_lshl_add_u32 {vWo[0]}, {vT0}, 10, {vT1}")
    for b in range(1, 4):
        e(f"v_add_u32 {vWo[b]}, {b*7168}, {vWo[0]}")
    e(f"s_lshl_b32 {S['t2']}, {S['w']}, 17")
    e(f"s_lshl_b32 {S['t3']}, {S['ct']}, 7")
    e(f"s_add_u32 {S['t2']}, {S['t2']}, {S['t3']}")
    e(f"s_lshl_b32 {S['t3']}, {S['w']}, 14")
    e(f"s_add_u32 m0, {S['t3']}, {LR}")
    for gq in range(4):
        if gq:
            e(f"s_add_u32 {S['t2']}, {S['t2']}, 32768")
            e(f"s_add_u32 m0, m0, 4096")
        for b in range(4):
            e(f"buffer_load_dwordx4 {vWo[b]}, {srd(sWO)}, {S['t2']} offen offset:{b*1024} lds", tag="wo")
    XR = 232
    vRes = "v240"
    e(f"v_and_b32 {vT0}, 31, {vL}")
    e(f"v_lshrrev_b32 {vT1}, 5, {vL}")
    e(f"v_lshlrev_b32 {vT1}, 5, {vT1}")
    e(f"v_lshl_add_u32 {vRes}, {vT0}, 10, {vT1}")
    e(f"s_and_b32 {S['t0']}, {S['w']}, 1")
    e(f"s_lshl1_add_u32 {S['t0']}, {S['rb2']}, {S['t0']}")
    e(f"s_lshl_b32 {S['res']}, {S['t0']}, 15")
    e(f"s_lshr_b32 {S['t1']}, {S['w']}, 1")
    e(f"s_lshl1_add_u32 {S['t1']}, {S['ct']}, {S['t1']}")
    e(f"s_lshl_b32 {S['t1']}, {S['t1']}, 6")
    e(f"s_add_u32 {S['res']}, {S['res']}, {S['t1']}")
    e(f"buffer_load_dwordx4 {q4(XR)}, {vRes}, {srd(sX)}, {S['res']} offen", tag="xr")
    e(f"buffer_load_dwordx4 {q4(XR+4)}, {vRes}, {srd(sX)}, {S['res']} offen offset:16", tag="xr")
    vSig = "v241"
    e(f"s_lshl_b32 {S['t0']}, {S['g']}, 7")
    e(f"v_lshlrev_b32 {vSig}, 10, {vL}")
    e(f"v_add_u32 {vSig}, {S['t0']}, {vSig}")
    e(f"s_add_u32 {S['t0']}, {S['rb1']}, {C_PQ}")
    e(f"s_lshl_b32 {S['t0']}, {S['t0']}, 7")
    e(f"v_mov_b32 {vT0}, {S['t0']}")
    e(f"v_cmp_gt_u32 vcc, 8, {vL}")
    e(f"v_cndmask_b32 {vSig}, {vT0}, {vSig}, vcc")
    e(f"s_mov_b32 {S['t1']}, {CNT}")
    k.wait(vm="pqs")
    e("s_barrier")
    def sig1():
        setexec(9)
        e(f"buffer_atomic_add {vOne}, {vSig}, {srd(sWS)}, {S['t1']} offen sc1")
        setexec(64)
    wave0(sig1)
    stamp()

    RF = 28
    def repack_body():
        lw = k.lab("rbwd"); ld = k.lab("rbd"); lsk = k.lab("rbs")
        e(f"v_bfe_u32 {vT0}, {vL}, 2, 2")
        e(f"v_lshrrev_b32 {vT1}, 5, {vL}")
        e(f"v_bfe_u32 {vT2}, {vL}, 4, 1")
        e(f"s_cmp_ge_u32 {S['u']}, 176")
        e(f"s_cbranch_scc1 {lw}")
        k.optional = True
        e(f"v_lshlrev_b32 {vT0}, 7, {vT0}")
        e(f"v_lshl_add_u32 {vT0}, {vT1}, 12, {vT0}")
        e(f"v_lshl_add_u32 {vT0}, {vT2}, 4, {vT0}")
        e(f"v_bfe_u32 {vT2}, {vL}, 1, 1")
        e(f"v_lshl_add_u32 {vT0}, {vT2}, 11, {vT0}")
        e(f"v_and_b32 {vT2}, 1, {vL}")
        e(f"v_lshl_add_u32 {vT0}, {vT2}, 3, {vT0}")
        e(f"s_lshl_b32 {S['t0']}, {S['w']}, 5")
        e(f"s_add_u32 {S['t0']}, {S['t0']}, {LS}")
        e(f"v_add_u32 {vT0}, {S['t0']}, {vT0}")
        e(f"s_lshr_b32 {S['t1']}, {S['u']}, 3")
        e(f"s_lshl2_add_u32 {S['t1']}, {S['t1']}, {S['w']}")
        e(f"s_cmp_ge_u32 {S['t1']}, 86")
        e(f"s_cbranch_scc1 {ld}")
        for ks in range(4):
            o = (ks >> 1)*8192 + (ks & 1)*1024
            e(f"ds_read_b64_tr_b16 v[{RF+4*ks}:{RF+4*ks+1}], {vT0} offset:{o}")
            e(f"ds_read_b64_tr_b16 v[{RF+4*ks+2}:{RF+4*ks+3}], {vT0} offset:{o+512}")
        e(f"s_and_b32 {S['t2']}, {S['u']}, 7")
        e(f"s_lshl3_add_u32 {S['t2']}, {S['t1']}, {S['t2']}")
        e(f"s_lshl_b32 {S['t2']}, {S['t2']}, 12")
        e(f"s_add_u32 {S['t2']}, {S['t2']}, {W3_OFF}")
        e(f"s_lshl_b32 {S['t1']}, {S['t1']}, 7")
        e(f"s_add_u32 {S['t1']}, {S['t1']}, {CS_OFF}")
        e("s_waitcnt lgkmcnt(0)")
        for ks in range(4):
            e(f"buffer_store_dwordx4 {q4(RF+4*ks)}, {vL16}, {srd(sWS)}, {S['t2']} offen offset:{ks*1024} sc1")
            e(f"v_mfma_f32_32x32x16_bf16 v[44:59], {q4(ONE)}, {q4(RF+4*ks)}, {'0' if ks == 0 else 'v[44:59]'}")
        setexec(32)
        e(f"buffer_atomic_add_f32 v44, {vL4}, {srd(sWS)}, {S['t1']} offen")
        setexec(64)
        e(f"s_branch {ld}")
        e(f"{lw}:")
        e(f"v_lshl_add_u32 {vT0}, {vT1}, 2, {vT0}")
        e(f"v_lshlrev_b32 {vT0}, 10, {vT0}")
        e(f"v_lshl_add_u32 {vT0}, {vT2}, 4, {vT0}")
        e(f"v_bfe_u32 {vT2}, {vL}, 1, 1")
        e(f"v_lshl_add_u32 {vT0}, {vT2}, 3, {vT0}")
        e(f"v_and_b32 {vT2}, 1, {vL}")
        e(f"v_lshl_add_u32 {vT0}, {vT2}, 5, {vT0}")
        e(f"s_lshl_b32 {S['t0']}, {S['w']}, 8")
        e(f"s_add_u32 {S['t0']}, {S['t0']}, {LS}")
        e(f"v_add_u32 {vT0}, {S['t0']}, {vT0}")
        for i in range(4):
            e(f"ds_read_b64_tr_b16 v[{RF+4*i}:{RF+4*i+1}], {vT0} offset:{i*64}")
            e(f"ds_read_b64_tr_b16 v[{RF+4*i+2}:{RF+4*i+3}], {vT0} offset:{i*64+8192}")
        e(f"s_sub_u32 {S['t2']}, {S['u']}, 176")
        e(f"s_lshl2_add_u32 {S['t2']}, {S['t2']}, {S['w']}")
        e(f"s_lshl_b32 {S['t2']}, {S['t2']}, 12")
        e(f"s_add_u32 {S['t2']}, {S['t2']}, {WD_OFF}")
        e("s_waitcnt lgkmcnt(0)")
        for i in range(4):
            e(f"buffer_store_dwordx4 {q4(RF+4*i)}, {vL16}, {srd(sWS)}, {S['t2']} offen offset:{i*1024} sc1")
        k.optional = False
        e(f"{ld}:")
    repack_body()
    l2 = k.lab("rp2")
    e(f"s_cmp_lt_u32 s2, 250")
    e(f"s_cbranch_scc1 {l2}")
    e(f"s_add_u32 {S['u']}, s2, 6")
    e("s_barrier")
    repack_loads()
    k.optional = True
    e("s_waitcnt vmcnt(0)")
    k.optional = False
    e("s_barrier")
    repack_body()
    e(f"{l2}:")
    vOa = ["v186", "v187"]
    e(f"v_bfe_u32 {vT0}, {vL}, 2, 2")
    e(f"v_lshrrev_b32 {vT1}, 5, {vL}")
    e(f"v_lshlrev_b32 {vT1}, 10, {vT1}")
    e(f"v_lshl_add_u32 {vT1}, {vT0}, 7, {vT1}")
    e(f"v_lshrrev_b32 {vT0}, 1, {vT0}")
    e(f"s_lshr_b32 {S['t0']}, {S['w']}, 1")
    e(f"v_xor_b32 {vT0}, {S['t0']}, {vT0}")
    e(f"v_lshl_add_u32 {vT1}, {vT0}, 6, {vT1}")
    e(f"v_and_b32 {vT0}, 1, {vL}")
    e(f"v_lshl_add_u32 {vT1}, {vT0}, 5, {vT1}")
    e(f"v_bfe_u32 {vT0}, {vL}, 4, 1")
    e(f"v_lshl_add_u32 {vT1}, {vT0}, 4, {vT1}")
    e(f"v_bfe_u32 {vT0}, {vL}, 1, 1")
    e(f"v_lshl_add_u32 {vT1}, {vT0}, 3, {vT1}")
    e(f"s_lshl_b32 {S['t0']}, {S['w']}, 14")
    e(f"s_add_u32 {S['t0']}, {S['t0']}, {LR}")
    e(f"v_add_u32 {vOa[0]}, {S['t0']}, {vT1}")
    e(f"v_xor_b32 {vOa[1]}, 64, {vOa[0]}")
    e("s_waitcnt vmcnt(0)")
    e("s_barrier")
    e(f"s_lshr_b32 {S['t0']}, s2, 5")
    e(f"s_add_u32 {S['t0']}, {S['t0']}, {C_RP}")
    e(f"s_lshl_b32 {S['t0']}, {S['t0']}, 7")
    e(f"s_add_u32 {S['t0']}, {S['t0']}, {CNT}")
    e(f"v_lshlrev_b32 {vSig}, 10, {vL}")
    def sig2():
        setexec(8)
        e(f"buffer_atomic_add {vOne}, {vSig}, {srd(sWS)}, {S['t0']} offen sc1")
        setexec(64)
    wave0(sig2)
    for hh in range(8):
        for n in range(2):
            a = hh*8 + n*4
            e(f"ds_read_b64_tr_b16 a[{a}:{a+1}], {vOa[n]} offset:{hh*2048}", tag="wof")
            e(f"ds_read_b64_tr_b16 a[{a+2}:{a+3}], {vOa[n]} offset:{hh*2048+512}", tag="wof")
    stamp()

    vL128 = "v242"
    vPT = "v243"
    e(f"v_lshlrev_b32 {vL128}, 7, {vL}")
    vPQl, vKVl = "v244", "v245"
    e(f"v_and_b32 {vT0}, 31, {vL}")
    e(f"v_lshrrev_b32 {vT1}, 5, {vL}")
    e(f"v_lshlrev_b32 {vT2}, 4, {vT1}")
    e(f"v_lshl_add_u32 {vPQl}, {vT0}, 5, {vT2}")
    e(f"v_and_b32 {vT2}, 3, {vL}")
    e(f"v_lshlrev_b32 {vT2}, 2, {vT2}")
    e(f"v_bfe_u32 {vT3}, {vL}, 2, 1")
    e(f"v_lshl_add_u32 {vT2}, {vT3}, 1, {vT2}")
    e(f"v_bfe_u32 {vT3}, {vL}, 3, 1")
    e(f"v_add_u32 {vT2}, {vT2}, {vT3}")
    e(f"v_cmp_gt_u32 vcc, 16, {vT0}")
    e(f"v_cndmask_b32 {vT2}, 16, {vT2}, vcc")
    e(f"v_lshlrev_b32 {vT2}, 6, {vT2}")
    e(f"v_lshl_add_u32 {vKVl}, {vT1}, 5, {vT2}")
    e(f"s_and_b32 {S['t0']}, {S['w']}, 1")
    e(f"s_lshl1_add_u32 {S['t0']}, {S['rb2']}, {S['t0']}")
    e(f"s_lshl2_add_u32 {S['t0']}, {S['t0']}, {S['w']}")
    e(f"s_lshl_b32 {S['t0']}, {S['t0']}, 13")
    e(f"s_add_u32 {S['s0']}, {S['t0']}, {PQ_OFF}")
    e(f"s_xor_b32 {S['s1']}, {S['s0']}, {32*1024}")
    e(f"s_add_u32 {S['s2']}, {S['s0']}, 4096")
    e(f"s_add_u32 {S['s3']}, {S['s1']}, 4096")
    e(f"s_add_u32 {S['t2']}, {S['rb2']}, {C_PQ}")
    e(f"s_lshl_b32 {S['t2']}, {S['t2']}, 7")
    e(f"s_add_u32 {S['t2']}, {S['t2']}, {CNT}")
    wave0(lambda: poll(vL128, S['t2'], 1, 8, vPT))
    e("s_barrier")
    stamp()
    PQF = lambda sp, hh: 64 + hh*8 + sp*4
    for hh in range(8):
        for sp in range(2):
            so = S[['s0', 's1', 's2', 's3'][sp + 2*(hh >> 2)]]
            a = PQF(sp, hh)
            e(f"buffer_load_dwordx4 a[{a}:{a+3}], {vPQl}, {srd(sWS)}, {so} offen offset:{(hh & 3)*1024} sc1", tag=f"pq{hh}")
    e(f"s_lshl_b32 {S['t2']}, {S['x']}, 10")
    e(f"s_add_u32 {S['t2']}, {S['t2']}, {CNT + C_KV*128}")
    wave0(lambda: poll(vL128, S['t2'], 8, 32, vPT))
    e("s_barrier")
    stamp()
    KR = 28
    KF = 92
    e(f"s_mul_i32 {S['t0']}, {S['w']}, {8*1152}")
    e(f"s_add_u32 {S['t1']}, {S['t0']}, {4*1152}")
    for hh in range(8):
        for h in range(2):
            e(f"buffer_load_dwordx4 {q4(KR + 8*hh + 4*h)}, {vKVl}, {srd(sWS)}, {S['t0'] if hh < 4 else S['t1']} offen offset:{(hh & 3)*1152 + 16*h} sc1", tag=f"kv{hh}")
    e(f"s_lshr_b32 {S['t2']}, 0x1133, {S['c']}")
    e(f"s_and_b32 {S['t2']}, {S['t2']}, 1")
    e(f"s_add_u32 {S['sz3']}, {S['t2']}, 5")
    e(f"s_lshl_b32 {S['t2']}, 1, {S['c']}")
    e(f"s_sub_u32 {S['t2']}, {S['t2']}, 1")
    e(f"s_and_b32 {S['t2']}, {S['t2']}, 0x1133")
    e(f"s_bcnt1_i32_b32 {S['t2']}, {S['t2']}")
    e(f"s_mul_i32 {S['st3']}, {S['c']}, 5")
    e(f"s_add_u32 {S['st3']}, {S['st3']}, {S['t2']}")
    e(f"s_lshl_b32 {S['t2']}, {S['x']}, 10")
    e(f"s_add_u32 {S['t2']}, {S['t2']}, {CNT + C_RP*128}")
    wave0(lambda: poll(vL128, S['t2'], 8, 32, vPT))
    k.wait(lg="wof")
    e("s_barrier")
    SLOT = [32768, 65536, 98304, 0, 32768, 65536]
    def dma_w3(t):
        e(f"s_add_u32 {S['t2']}, {S['st3']}, {t}")
        e(f"s_lshl2_add_u32 {S['t2']}, {S['t2']}, {S['w']}")
        e(f"s_lshl_b32 {S['t2']}, {S['t2']}, 13")
        e(f"s_add_u32 {S['t2']}, {S['t2']}, {W3_OFF}")
        e(f"s_lshl_b32 {S['t3']}, {S['w']}, 13")
        e(f"s_add_u32 m0, {S['t3']}, {SLOT[t]}")
        for hq in range(2):
            if hq:
                e(f"s_add_u32 {S['t2']}, {S['t2']}, 4096")
                e(f"s_add_u32 m0, m0, 4096")
            for i in range(4):
                e(f"buffer_load_dwordx4 {vL16}, {srd(sWS)}, {S['t2']} offen offset:{i*1024} sc1 lds", tag=f"w3_{t}")
    for t in range(3):
        dma_w3(t)
    for hh in range(8):
        k.wait(vm=f"kv{hh}")
        for h in range(4):
            e(f"v_cvt_pk_bf16_f32 v{KF + 4*hh + h}, v{KR + 8*hh + 2*h}, v{KR + 8*hh + 2*h + 1}")
    DB = [28, 44, 60]
    OF = [76, 80]
    ACC = [124 + 16*d for d in range(4)]
    def q16(n): return f"v[{n}:{n+15}]"
    def s1(n):
        hh, sp = n >> 1, n & 1
        a = PQF(sp, hh)
        return f"v_mfma_f32_32x32x16_bf16 {q16(DB[n % 3])}, {q4(KF + 4*hh)}, a[{a}:{a+3}], 0"
    def s2(n, nn):
        hh, sp = n >> 1, n & 1
        a = hh*8 + nn*4
        d = ACC[2*nn + sp]
        return f"v_mfma_f32_32x32x16_bf16 {q16(d)}, a[{a}:{a+3}], {q4(OF[n & 1])}, {'0' if hh == 0 else q16(d)}"
    def vv(n):
        D = DB[n % 3]; o = OF[n & 1]
        r = [f"v_add_f32 v{D+8}, {S['t5']}, v{D+8}", f"v_rcp_f32 v{D+8}, v{D+8}"]
        r += [f"v_mul_f32 v{D+j}, v{D+j}, v{D+8}" for j in range(8)]
        r += [f"v_cvt_pk_bf16_f32 v{o+j}, v{D+2*j}, v{D+2*j+1}" for j in range(4)]
        return r
    e(f"s_mov_b32 {S['t5']}, {f2u(1e-6)}")
    e(s1(0)); e(s1(1))
    for n in range(16):
        v = vv(n)
        mf = []
        if n > 0:
            mf += [s2(n-1, 0), s2(n-1, 1)]
        if n + 2 < 16:
            mf += [s1(n+2)]
        interleave(k, mf, v, per=5)
    e(s2(15, 0)); e(s2(15, 1))

    def reduce_tiles():
        e(f"s_lshl_b32 {S['t0']}, {S['w']}, 12")
        e(f"v_add_u32 {vT0}, {S['t0']}, {vL16}")
        e(f"v_add_u32 {vT1}, {LS}, {vT0}")
        for d in (1, 2, 3):
            for a in range(4):
                if d < 3:
                    e(f"ds_write_b128 {vT0}, {q4(ACC[d] + 4*a)} offset:{(d-1)*16384 + a*1024}", tag="rw")
                else:
                    e(f"ds_write_b128 {vT1}, {q4(ACC[d] + 4*a)} offset:{a*1024}", tag="rw")
        e(f"v_xor_b32 {vT2}, {1*4096}, {vT0}")
        e(f"v_xor_b32 {vT3}, {2*4096}, {vT0}")
        e(f"v_xor_b32 {vT1}, {3*4096}, {vT1}")
        k.wait(lg="rw")
        e("s_barrier")
        for d, vb, o in ((1, vT2, 0), (2, vT3, 16384), (3, vT1, 0)):
            for a in range(4):
                e(f"ds_read_b128 {q4(ACC[d] + 4*a)}, {vb} offset:{o + a*1024}", tag=f"rr{d}")
        for d in (1, 2, 3):
            k.wait(lg=f"rr{d}")
            for j in range(16):
                e(f"v_add_f32 v{ACC[0]+j}, v{ACC[0]+j}, v{ACC[d]+j}")
    reduce_tiles()
    HB = 232
    A0 = ACC[0]
    for j in range(8):
        e(f"v_lshlrev_b32 v{ACC[1]+2*j}, 16, v{XR+j}")
        e(f"v_and_b32 v{ACC[1]+2*j+1}, 0xffff0000, v{XR+j}")
    for j in range(16):
        e(f"v_add_f32 v{A0+j}, v{A0+j}, v{ACC[1]+j}")
    for j in range(8):
        e(f"v_cvt_pk_bf16_f32 v{HB+j}, v{A0+2*j}, v{A0+2*j+1}")
    e(f"s_and_b32 {S['t0']}, {S['w']}, 1")
    e(f"s_lshl1_add_u32 {S['t0']}, {S['rb2']}, {S['t0']}")
    e(f"s_lshr_b32 {S['t1']}, {S['w']}, 1")
    e(f"s_lshl1_add_u32 {S['t1']}, {S['ct']}, {S['t1']}")
    e(f"s_lshl4_add_u32 {S['t0']}, {S['t0']}, {S['t1']}")
    e(f"s_lshl_b32 {S['t1']}, {S['t0']}, 11")
    e(f"s_add_u32 {S['t1']}, {S['t1']}, {HP_OFF}")
    e(f"s_lshl_b32 {S['t0']}, {S['t0']}, 8")
    e(f"s_add_u32 {S['t0']}, {S['t0']}, {ST_OFF}")
    e(f"buffer_store_dwordx4 {q4(HB)}, {vL16}, {srd(sWS)}, {S['t1']} offen sc1", tag="hs")
    e(f"buffer_store_dwordx4 {q4(HB+4)}, {vL16}, {srd(sWS)}, {S['t1']} offen offset:1024 sc1", tag="hs")
    sa, sb, sc, sd = ACC[2], ACC[2]+1, ACC[2]+2, ACC[2]+3
    e(f"v_add_f32 v{sa}, v{A0}, v{A0+1}")
    e(f"v_mul_f32 v{sb}, v{A0}, v{A0}")
    e(f"v_add_f32 v{sc}, v{A0+2}, v{A0+3}")
    e(f"v_mul_f32 v{sd}, v{A0+1}, v{A0+1}")
    for j in range(2, 16, 2):
        if j >= 4:
            e(f"v_add_f32 v{sa}, v{sa}, v{A0+j}")
            e(f"v_add_f32 v{sc}, v{sc}, v{A0+j+1}")
        e(f"v_fmac_f32 v{sb}, v{A0+j}, v{A0+j}")
        e(f"v_fmac_f32 v{sd}, v{A0+j+1}, v{A0+j+1}")
    e(f"v_add_f32 v{sa}, v{sa}, v{sc}")
    e(f"v_add_f32 v{sb}, v{sb}, v{sd}")
    e(f"v_permlane32_swap_b32 v{sa}, v{sb}")
    e(f"v_add_f32 v{sa}, v{sa}, v{sb}")
    e(f"buffer_store_dword v{sa}, {vL4}, {srd(sWS)}, {S['t0']} offen sc1", tag="hs")
    e(f"s_lshr_b32 {S['t0']}, {S['rb2']}, 1")
    e(f"s_lshl_b32 {S['t0']}, {S['t0']}, 8")
    e(f"s_add_u32 {S['t0']}, {S['t0']}, {CNT + C_H*128}")
    k.wait(vm="hs")
    e("s_barrier")
    def sig3():
        setexec(2)
        e(f"buffer_atomic_add {vOne}, {vL128}, {srd(sWS)}, {S['t0']} offen sc1")
        setexec(64)
    wave0(sig3)
    stamp()
    dma_w3(3)

    def HF(ks):
        return f"a[{176 + 4*ks}:{179 + 4*ks}]" if ks < 20 else q4(28 + 4*(ks - 20))
    AC3 = [76, 92, 108]
    W3F = [124 + 4*i for i in range(6)]
    CSR = [148, 164]
    STT = 180
    ET = 196
    GO = [220, 224]
    vMean, vC1, vC3, vV = "v228", "v229", "v230", "v231"
    vLH = "v246"
    vHF = "v247"
    e(f"v_add_u32 {vLH}, 0x10000, {vL16}")
    e(f"v_lshrrev_b32 {vHF}, 5, {vL}")
    e(f"v_lshlrev_b32 {vHF}, 4, {vHF}")
    e(f"s_lshl2_add_u32 {S['rt']}, {S['B']}, {S['w']}")
    e(f"s_lshl_b32 {S['t1']}, {S['rt']}, 15")
    e(f"s_add_u32 {S['t1']}, {S['t1']}, {HP_OFF}")
    e(f"s_lshl1_add_u32 {S['t2']}, {S['B']}, {S['xp']}")
    e(f"s_lshl_b32 {S['t2']}, {S['t2']}, 7")
    e(f"s_add_u32 {S['t2']}, {S['t2']}, {CNT + C_H*128}")
    k.wait(vm="w3_2")
    wave0(lambda: poll(vL128, S['t2'], 1, 16, vPT, presleep=4))
    e("s_barrier")
    stamp()
    for ks in range(32):
        if ks and ks % 4 == 0:
            e(f"s_add_u32 {S['t1']}, {S['t1']}, 4096")
        e(f"buffer_load_dwordx4 {HF(ks)}, {vL16}, {srd(sWS)}, {S['t1']} offen offset:{(ks % 4)*1024} sc1", tag=f"h{ks}")
    e(f"s_lshl_b32 {S['t1']}, {S['rt']}, 12")
    e(f"s_add_u32 {S['t1']}, {S['t1']}, {ST_OFF}")
    for n in range(16):
        e(f"buffer_load_dword v{STT+n}, {vL4}, {srd(sWS)}, {S['t1']} offen offset:{n*256} sc1", tag="sts")
    e(f"s_lshl_b32 {S['s0']}, {S['st3']}, 7")
    e(f"s_add_u32 {S['s0']}, {S['s0']}, {CS_OFF}")
    e(f"s_mul_i32 {S['s1']}, {S['rt']}, 86")
    e(f"s_add_u32 {S['s1']}, {S['s1']}, {S['st3']}")
    e(f"s_lshl_b32 {S['s1']}, {S['s1']}, 10")
    e(f"s_add_u32 {S['s1']}, {S['s1']}, {GP_OFF}")
    e(f"s_add_u32 {S['s2']}, {S['s1']}, 4096")
    def ld_cs(t):
        return [(f"buffer_load_dwordx4 {q4(CSR[t & 1] + 4*a)}, {vHF}, {srd(sWS)}, {S['s0']} offen offset:{t*128 + a*32} sc1", f"cs{t}") for a in range(4)]
    for x in ld_cs(0) + ld_cs(1):
        e(x[0], tag=x[1])
    def rd3(t, ks, b):
        base, o = (vL16, SLOT[t]) if SLOT[t] < 65536 else (vLH, SLOT[t] - 65536)
        return (f"ds_read_b128 {q4(W3F[b])}, {base} offset:{o + ks*1024}", f"wf{b}")
    def mf3(t, ks, b):
        d = AC3[t % 3]
        return f"v_mfma_f32_32x32x16_bf16 {q16(d)}, {q4(W3F[b])}, {HF(ks)}, {'0' if ks == 0 else q16(d)}"

    WDS = ["s4", "s5", "s6", "s7"]
    def chunk_starts():
        for cc in range(4):
            e(f"s_lshl2_add_u32 {S['t0']}, {S['w']}, {cc}")
            e(f"s_lshl_b32 {S['t2']}, 1, {S['t0']}")
            e(f"s_sub_u32 {S['t2']}, {S['t2']}, 1")
            e(f"s_and_b32 {S['t2']}, {S['t2']}, 0x1133")
            e(f"s_bcnt1_i32_b32 {S['t2']}, {S['t2']}")
            e(f"s_mul_i32 {S['t0']}, {S['t0']}, 5")
            e(f"s_add_u32 {WDS[cc]}, {S['t0']}, {S['t2']}")
    chunk_starts()
    slots4 = [(t, cc) for t in range(5) for cc in range(4)] + [(5, 0), (5, 1)]
    e(f"s_lshr_b32 {S['t0']}, {S['w']}, 1")
    e(f"s_lshl1_add_u32 {S['t0']}, {S['ct']}, {S['t0']}")
    e(f"s_lshl_b32 {S['t0']}, {S['t0']}, 10")
    e(f"s_add_u32 s8, {S['t0']}, {WD_OFF}")
    def ld_wd(i):
        t, cc = slots4[i]
        def f():
            e(f"s_add_u32 {S['t0']}, {WDS[cc]}, {t}")
            e(f"s_lshl_b32 {S['t0']}, {S['t0']}, 14")
            e(f"s_add_u32 {S['t0']}, {S['t0']}, s8")
            e(f"s_xor_b32 {S['t3']}, {S['t0']}, 1024")
            e(f"buffer_load_dwordx4 a[{8*i}:{8*i+3}], {vL16}, {srd(sWS)}, {S['t0']} offen sc1", tag="wd")
            e(f"buffer_load_dwordx4 a[{8*i+4}:{8*i+7}], {vL16}, {srd(sWS)}, {S['t3']} offen sc1", tag="wd")
        return f

    for b, (t, ks) in enumerate([(0, 0), (1, 0), (0, 1), (1, 1)]):
        x = rd3(t, ks, b); e(x[0], tag=x[1])
    seq = [(t, ks) for ks in range(32) for t in range(2)] + [(t, ks) for t in range(2, 6) for ks in range(32)]
    epi_done = set()
    def epi(t):
        A = AC3[t % 3]; C = CSR[t & 1]; o = GO[t & 1]
        groups = []
        for p in range(2):
            for b in range(4):
                g, u = A + 8*p + b, A + 8*p + 4 + b
                tm = ET + 4*p + b
                groups.append([
                    f"v_fma_f32 v{g}, -{vMean}, v{C + 8*p + b}, v{g}",
                    f"v_fma_f32 v{u}, -{vMean}, v{C + 8*p + 4 + b}, v{u}",
                    f"v_mul_f32 v{tm}, v{g}, v{g}",
                    f"v_fma_f32 v{tm}, v{tm}, {vC3}, {vC1}",
                    f"v_mul_f32 v{tm}, v{tm}, v{g}",
                    f"v_exp_f32 v{tm}, v{tm}",
                    f"v_mul_f32 v{g}, v{g}, v{u}",
                    f"v_fma_f32 v{tm}, v{tm}, {vV}, {vV}",
                    f"v_rcp_f32 v{tm}, v{tm}",
                    f"v_mul_f32 v{g}, v{g}, v{tm}"])
        r = [lambda t=t: k.wait(vm=f"cs{t}")]
        for j in range(10):
            for gp in groups:
                r.append(gp[j])
        for p in range(2):
            for h in range(2):
                r.append(f"v_cvt_pk_bf16_f32 v{o + 2*p + h}, v{A + 8*p + 2*h}, v{A + 8*p + 2*h + 1}")
        so = S['s1'] if t < 4 else S['s2']
        r.append((f"buffer_store_dwordx4 {q4(o)}, {vL16}, {srd(sWS)}, {so} offen offset:{(t % 4)*1024} sc1", f"gs{t}"))
        if t + 2 < 6:
            r += ld_cs(t + 2)
        r.append(lambda t=t: epi_done.add(t))
        return r
    def stats_final():
        r = [lambda: k.wait(vm="sts")]
        for n in (8, 4, 2, 1):
            for j in range(n):
                r.append(f"v_add_f32 v{STT+j}, v{STT+j}, v{STT+j+n}")
        r += [f"v_mov_b32 v{STT+1}, v{STT}",
              f"s_nop 1",
              f"v_permlane32_swap_b32 v{STT}, v{STT+1}",
              f"v_mul_f32 {vMean}, {f2u(1/512)}, v{STT}",
              f"v_mul_f32 v{STT+2}, {vMean}, {vMean}",
              f"v_fma_f32 v{STT+2}, -v{STT+2}, 1.0, 0",
              f"v_fmamk_f32 {vV}, v{STT+1}, {f2u(1/512)}, v{STT+2}",
              f"v_max_f32 {vV}, 0, {vV}",
              f"v_add_f32 {vV}, {f2u(1e-5)}, {vV}",
              f"v_rsq_f32 v{STT+3}, {vV}",
              f"s_nop 0",
              f"v_mul_f32 {vC1}, {f2u(-2*0.7978845608028654*LOG2E)}, v{STT+3}",
              f"v_mul_f32 v{STT+3}, v{STT+3}, v{STT+3}",
              f"v_mul_f32 v{STT+3}, {f2u(0.044715)}, v{STT+3}",
              f"v_mul_f32 {vC3}, {vC1}, v{STT+3}"]
        return r

    NB = 6
    def run_stream(i0, i1, fillers, per, last):
        fi = 0
        def put(f):
            if callable(f): f()
            elif isinstance(f, tuple): e(f[0], tag=f[1])
            else: e(f)
        for i in range(i0, i1):
            t, ks = seq[i]
            if ks == 0 and t >= 3:
                assert (t - 3) in epi_done, t
            if i < 64 and t == 0:
                k.wait(vm=f"h{ks}", lg=f"wf{i % NB}")
            else:
                k.wait(lg=f"wf{i % NB}")
            e(mf3(t, ks, i % NB))
            if i + 4 < last:
                x = rd3(seq[i+4][0], seq[i+4][1], (i+4) % NB); e(x[0], tag=x[1])
            n = 0
            while n < per and fi < len(fillers):
                f = fillers[fi]; fi += 1
                put(f)
                n += 2 if (isinstance(f, str) and (f.startswith("v_exp") or f.startswith("v_rcp"))) else 1
        return fillers[fi:]

    rest = run_stream(0, 60, [], 0, 192)
    rest = run_stream(60, 64, stats_final(), 5, 192)
    rest2 = rest
    k.wait(vm="w3_3")
    e("s_barrier")
    fill = rest2 + [lambda: dma_w3(4), lambda: dma_w3(5)] + epi(0) + [ld_wd(i) for i in range(0, 6)] + epi(1) + \
        [ld_wd(i) for i in range(6, 12)]
    rest = run_stream(64, 96, fill, 5, 192)
    fill = rest + epi(2) + [ld_wd(i) for i in range(12, 22)]
    rest = run_stream(96, 124, fill, 5, 128)
    k.wait(vm="w3_5")
    e("s_barrier")
    rest = run_stream(124, 128, rest, 5, 160)
    fill = rest + epi(3)
    rest = run_stream(128, 160, fill, 5, 160)
    for f in rest:
        if callable(f): f()
        elif isinstance(f, tuple): e(f[0], tag=f[1])
        else: e(f)
    l5 = k.lab("five"); lj = k.lab("join")
    e(f"s_cmp_lt_u32 {S['sz3']}, 6")
    e(f"s_cbranch_scc1 {l5}")
    import copy
    sv = (copy.deepcopy(k.vm), copy.deepcopy(k.lg))
    for b in range(4):
        x = rd3(5, b, (160 + b) % NB); e(x[0], tag=x[1])
    rest = run_stream(160, 192, epi(4), 5, 192)
    for f in rest + epi(5):
        if callable(f): f()
        elif isinstance(f, tuple): e(f[0], tag=f[1])
        else: e(f)
    e("s_waitcnt vmcnt(0) lgkmcnt(0)")
    e(f"s_branch {lj}")
    e(f"{l5}:")
    k.vm, k.lg = sv
    for f in epi(4):
        if callable(f): f()
        elif isinstance(f, tuple): e(f[0], tag=f[1])
        else: e(f)
    e("s_waitcnt vmcnt(0) lgkmcnt(0)")
    e(f"{lj}:")
    e("s_barrier")
    e(f"s_lshl_b32 {S['t0']}, {S['B']}, 7")
    e(f"s_add_u32 {S['t0']}, {S['t0']}, {CNT + C_G*128}")
    e(f"s_lshr_b32 {S['t2']}, {S['rb2']}, 1")
    e(f"s_lshl_b32 {S['t2']}, {S['t2']}, 7")
    e(f"s_add_u32 {S['t2']}, {S['t2']}, {CNT + C_G*128}")
    if debug:
        e("s_memrealtime s[12:13]")
        e("s_waitcnt lgkmcnt(0)")
    def sig4():
        setexec(1)
        e(f"buffer_atomic_add {vOne}, {vL128}, {srd(sWS)}, {S['t0']} offen sc1")
        poll(vL128, S['t2'], 1, 16, vPT, presleep=6)
    wave0(sig4)
    def GF(i, sp):
        n = 2*i + sp
        if n < 20:
            return f"a[{176 + 4*n}:{179 + 4*n}]"
        if n < 44:
            return q4(28 + 4*(n - 20))
    e(f"s_and_b32 {S['t0']}, {S['w']}, 1")
    e(f"s_lshl1_add_u32 {S['t0']}, {S['rb2']}, {S['t0']}")
    e(f"s_xor_b32 {S['t1']}, {S['t0']}, 1")
    e(f"s_mul_i32 {S['t0']}, {S['t0']}, {86*1024}")
    e(f"s_mul_i32 {S['t1']}, {S['t1']}, {86*1024}")
    e(f"s_add_u32 {S['s0']}, {S['t0']}, {GP_OFF}")
    e(f"s_add_u32 {S['s1']}, {S['t1']}, {GP_OFF}")
    for cc in range(4):
        e(f"s_lshl_b32 {WDS[cc]}, {WDS[cc]}, 10")
    e("s_barrier")
    if debug:
        e("s_memrealtime s[14:15]")
        e("s_waitcnt lgkmcnt(0)")
    for i, (t, cc) in enumerate(slots4):
        e(f"s_add_u32 {S['t0']}, {WDS[cc]}, {S['s0']}")
        e(f"s_add_u32 {S['t1']}, {WDS[cc]}, {S['s1']}")
        if t >= 4:
            e(f"s_add_u32 {S['t0']}, {S['t0']}, 4096")
            e(f"s_add_u32 {S['t1']}, {S['t1']}, 4096")
        e(f"buffer_load_dwordx4 {GF(i, 0)}, {vL16}, {srd(sWS)}, {S['t0']} offen offset:{(t % 4)*1024} sc1", tag=f"g{i}")
        e(f"buffer_load_dwordx4 {GF(i, 1)}, {vL16}, {srd(sWS)}, {S['t1']} offen offset:{(t % 4)*1024} sc1", tag=f"g{i}")
    lsk = k.lab("skip21")
    for i in range(22):
        if i == 21:
            e(f"s_cmp_ge_u32 {S['w']}, 2")
            e(f"s_cbranch_scc1 {lsk}")
        k.wait(vm=f"g{i}")
        for sp in range(2):
            for nn in range(2):
                d = ACC[2*nn + sp]
                e(f"v_mfma_f32_32x32x16_bf16 {q16(d)}, a[{8*i + 4*nn}:{8*i + 4*nn + 3}], {GF(i, sp)}, {'0' if i == 0 else q16(d)}")
    e(f"{lsk}:")
    reduce_tiles()
    for j in range(8):
        e(f"v_lshlrev_b32 v{ACC[1]+2*j}, 16, v{HB+j}")
        e(f"v_and_b32 v{ACC[1]+2*j+1}, 0xffff0000, v{HB+j}")
    for j in range(16):
        e(f"v_add_f32 v{A0+j}, v{A0+j}, v{ACC[1]+j}")
    for j in range(8):
        e(f"v_cvt_pk_bf16_f32 v{HB+j}, v{A0+2*j}, v{A0+2*j+1}")
    e(f"buffer_store_dwordx4 {q4(HB)}, {vRes}, {srd(sOUT)}, {S['res']} offen")
    e(f"buffer_store_dwordx4 {q4(HB+4)}, {vRes}, {srd(sOUT)}, {S['res']} offen offset:16")
    if debug:
        e("s_memrealtime s[16:17]")
        e("s_waitcnt lgkmcnt(0)")
        e(f"s_cmp_lg_u32 {S['w']}, 0")
        e("s_cbranch_scc1 L_end")
        e(f"s_lshl_b32 {S['t0']}, s2, 6")
        e(f"s_add_u32 {S['t0']}, {S['t0']}, {STAMP_OFF}")
        setexec(1)
        srcs = [f"s{92+i}" for i in range(nst[0])] + ["s12", "s14", "s16"]
        for i, sname in enumerate(srcs):
            e(f"v_mov_b32 v28, {sname}")
            e(f"buffer_store_dword v28, off, {srd(sWS)}, {S['t0']} offset:{4*i}")
            e("s_nop 1")
    e("L_end:")
    e("s_endpgm")

    n = k.fix_hazards(verbose=False)
    if k.errors:
        for x in k.errors[:20]:
            print("ERR", x, file=sys.stderr)
        raise SystemExit("pending-load errors")
    hdr = open("sequential_preLN__linear_attn_block__geglu_ffn__prompt.s.ref").read().split("; Override")[0]
    out = hdr + f"; @launch grid=(256,1,1) block=(256,1,1) lds={LDS_BYTES}\n"
    out += '.amdgcn_target "amdgcn-amd-amdhsa--gfx950"\n.text\n'
    out += f".globl {NAME}\n.p2align 8\n.type {NAME},@function\n{NAME}:\n"
    out += k.text()
    out += '.section .rodata,"a"\n.p2align 6\n'
    out += f""".amdhsa_kernel {NAME}
  .amdhsa_next_free_vgpr 512
  .amdhsa_next_free_sgpr 102
  .amdhsa_accum_offset 256
  .amdhsa_group_segment_fixed_size 0
  .amdhsa_kernarg_size 80
  .amdhsa_user_sgpr_count 2
  .amdhsa_user_sgpr_kernarg_segment_ptr 1
  .amdhsa_system_sgpr_workgroup_id_x 1
.end_amdhsa_kernel
"""
    print(f"generated {len(k.L)} lines, {n} hazard states inserted", file=sys.stderr)
    return out


if __name__ == "__main__":
    dbg = "--debug" in sys.argv
    o = [a for a in sys.argv[1:] if not a.startswith("--")]
    open(o[0], "w").write(gen(debug=dbg))
```

```python
import sys, math
sys.path.insert(0, "exp")
from asmlib import K, interleave

NAME = "sequential_preLN__linear_attn_block__geglu_ffn__prompt_kernel"

KV_OFF = 0
CS_OFF = 36864
CNT = 49152
NZ = 19
ST_OFF = 0x20000
PQ_OFF = 0x100000
HP_OFF = 0x300000
W3_OFF = 0x500000
WD_OFF = 0x7C0000
GP_OFF = 0x920000
WS_SIZE = 0x1000000
STAMP_OFF = 0xF00000
C_KV, C_RP, C_PQ, C_H, C_G = 0, 64, 128, 160, 192

LX, LR, LS, LM = 0, 65536, 131072, 147456
LDS_BYTES = 163840

LOG2E = 1.4426950408889634
import struct
def f2u(x):
    return "0x%08x" % struct.unpack("<I", struct.pack("<f", x))[0]

sX, sWQ, sWS, sWO, sWG, sWU, sWD, sOUT, sDBG = 24, 28, 32, 36, 40, 44, 48, 52, 56
def srd(n): return f"s[{n}:{n+3}]"
S = dict(w=60, x=61, j=62, rb1=63, g=64, rot=65, rb2=66, ct=67, B=68, c=69, xb=70, wb=71, t0=72, t1=73, t2=74, t3=75,
         mx=76, mw=77, hd=78, st3=79, sz3=80, xp=81, it=82, u=83, t4=84, t5=85, res=86, s0=87, s1=88, s2=89, s3=90, rt=91,
         stamp=92)
for _k, _v in list(S.items()):
    S[_k] = f"s{_v}"


def gen(debug=False, stop_after=None):
    k = K()
    e = k.e
    nst = [0]
    def stamp():
        if not debug:
            return
        e(f"s_memrealtime s[10:11]")
        e("s_waitcnt lgkmcnt(0)")
        e(f"s_mov_b32 s{92 + nst[0]}, s10")
        nst[0] += 1

    def setexec(n):
        m = (1 << n) - 1
        if n <= 6:
            e(f"s_mov_b64 exec, {m}")
        elif n == 64:
            e("s_mov_b64 exec, -1")
        else:
            e(f"s_mov_b32 exec_lo, {hex(m & 0xffffffff)}")
            e(f"s_mov_b32 exec_hi, {hex(m >> 32)}")

    def wave0(body):
        l = k.lab("w0")
        e(f"s_cmp_lg_u32 {S['w']}, 0")
        e(f"s_cbranch_scc1 {l}")
        k.optional = True
        body()
        k.optional = False
        e(f"{l}:")

    def poll(voff, soff, nl, expect, vtmp, srdn=sWS, presleep=0, sleep=2):
        l = k.lab("poll")
        setexec(nl)
        e(f"s_mov_b32 {S['it']}, 0")
        if presleep:
            e(f"s_sleep {presleep}")
        e(f"{l}:")
        e(f"buffer_load_dword {vtmp}, {voff}, {srd(srdn)}, {soff} offen sc1")
        e(f"s_add_u32 {S['it']}, {S['it']}, 1")
        e(f"s_cmp_gt_u32 {S['it']}, 0x40000")
        e("s_cbranch_scc1 L_end")
        e("s_waitcnt vmcnt(0)")
        e(f"v_cmp_gt_u32 vcc, {expect}, {vtmp}")
        l2 = k.lab("pok")
        e(f"s_cbranch_vccz {l2}")
        if sleep:
            e(f"s_sleep {sleep}")
        e(f"s_branch {l}")
        e(f"{l2}:")
        setexec(64)

    e("s_cmp_ge_u32 s2, 256")
    e("s_cbranch_scc1 L_end")
    e("s_load_dwordx16 s[4:19], s[0:1], 0")
    e("s_load_dwordx4 s[20:23], s[0:1], 64")
    vL, vT0, vT1, vT2, vT3 = "v1", "v2", "v3", "v4", "v5"
    vXs = ["v6", "v7"]
    vWs = ["v8", "v9", "v10", "v11"]
    vXa = [["v12", "v13", "v14", "v15"], ["v16", "v17", "v18", "v19"]]
    vWa = "v20"
    vL16 = "v21"
    vL4 = "v22"
    vOne = "v23"
    e(f"v_lshrrev_b32 {vT0}, 6, v0")
    e(f"v_and_b32 {vL}, 63, v0")
    e(f"v_readfirstlane_b32 {S['w']}, {vT0}")
    e(f"s_and_b32 {S['x']}, s2, 7")
    e(f"s_lshr_b32 {S['j']}, s2, 3")
    e(f"s_and_b32 {S['t0']}, {S['j']}, 7")
    e(f"s_lshr_b32 {S['t1']}, {S['j']}, 3")
    e(f"s_lshr_b32 {S['t2']}, {S['x']}, 1")
    e(f"s_and_b32 {S['xp']}, {S['x']}, 1")
    e(f"s_lshl3_add_u32 {S['rb1']}, {S['t2']}, {S['t0']}")
    e(f"s_lshl2_add_u32 {S['g']}, {S['xp']}, {S['t1']}")
    e(f"s_lshl1_add_u32 {S['rot']}, {S['t1']}, {S['t0']}")
    e(f"s_and_b32 {S['rot']}, {S['rot']}, 7")
    e(f"v_lshrrev_b32 {vT0}, 3, {vL}")
    e(f"v_and_b32 {vT1}, 7, {vL}")
    e(f"v_and_b32 {vT2}, 6, {vT0}")
    e(f"v_xor_b32 {vT2}, {vT2}, {vT1}")
    e(f"v_lshlrev_b32 {vT2}, 4, {vT2}")
    e(f"v_lshl_add_u32 {vXs[0]}, {vT0}, 10, {vT2}")
    e(f"v_add_u32 {vXs[1]}, 7168, {vXs[0]}")
    e(f"s_and_b32 {S['t3']}, {S['w']}, 1")
    e(f"s_lshl_b32 {S['t3']}, {S['t3']}, 2")
    e(f"v_and_b32 {vT2}, 2, {vT0}")
    e(f"v_or_b32 {vT2}, {S['t3']}, {vT2}")
    e(f"v_xor_b32 {vT2}, {vT2}, {vT1}")
    e(f"v_lshlrev_b32 {vT2}, 4, {vT2}")
    e(f"v_mul_u32_u24 {vT3}, 3072, {vT0}")
    e(f"v_add_u32 {vWs[2]}, {vT3}, {vT2}")
    e(f"v_add_u32 {vWs[0]}, 1024, {vWs[2]}")
    e(f"v_add_u32 {vWs[1]}, 98304, {vWs[2]}")
    e(f"v_add_u32 {vWs[3]}, 97280, {vWs[2]}")
    e(f"s_lshl2_add_u32 {S['xb']}, {S['rb1']}, {S['w']}")
    e(f"s_lshl_b32 {S['xb']}, {S['xb']}, 14")
    e(f"s_mul_i32 {S['wb']}, {S['w']}, 24576")
    e(f"s_lshl_b32 {S['t3']}, {S['g']}, 7")
    e(f"s_add_u32 {S['wb']}, {S['wb']}, {S['t3']}")
    e(f"s_lshl_b32 {S['mx']}, {S['w']}, 11")
    e(f"s_lshl_b32 {S['mw']}, {S['w']}, 12")
    e(f"s_add_u32 {S['mw']}, {S['mw']}, {LR}")
    e(f"s_mov_b32 s{sX+2}, {2048*1024}")
    e(f"s_mov_b32 s{sX+3}, 0x20000")
    e(f"s_mov_b32 s{sWQ+2}, {512*3072}")
    e(f"s_mov_b32 s{sWQ+3}, 0x20000")
    e(f"s_mov_b32 s{sWS+2}, {WS_SIZE}")
    e(f"s_mov_b32 s{sWS+3}, 0x20000")
    e("s_waitcnt lgkmcnt(0)")
    e(f"s_mov_b64 s[{sX}:{sX+1}], s[4:5]")
    e(f"s_mov_b64 s[{sWQ}:{sWQ+1}], s[6:7]")
    e(f"s_mov_b64 s[{sWS}:{sWS+1}], s[22:23]")
    stamp()

    def kc_of(s):
        e(f"s_add_u32 {S['t0']}, {S['rot']}, {s}")
        e(f"s_and_b32 {S['t0']}, {S['t0']}, 7")

    def dma_x(s, have_kc=False):
        if not have_kc:
            kc_of(s)
        e(f"s_lshl_b32 {S['t1']}, {S['t0']}, 7")
        e(f"s_add_u32 {S['t1']}, {S['t1']}, {S['xb']}")
        e(f"s_add_u32 m0, {S['mx']}, {LX + s*8192}")
        e(f"buffer_load_dwordx4 {vXs[0]}, {srd(sX)}, {S['t1']} offen lds", tag=f"x{s}")
        e(f"buffer_load_dwordx4 {vXs[1]}, {srd(sX)}, {S['t1']} offen offset:1024 lds", tag=f"x{s}")

    def dma_wkv(s, have_kc=False):
        if not have_kc:
            kc_of(s)
        e(f"s_mul_i32 {S['t1']}, {S['t0']}, 196608")
        e(f"s_add_u32 {S['t1']}, {S['t1']}, {S['wb']}")
        e(f"s_add_u32 m0, {S['mw']}, {(s % 4)*16384}")
        for i in range(4):
            e(f"buffer_load_dwordx4 {vWs[i]}, {srd(sWQ)}, {S['t1']} offen offset:{i*1024} lds", tag=f"w{s}")

    def dma_wq(p):
        for h in range(2):
            kc_of(2*p + h)
            e(f"s_mul_i32 {S['t1']}, {S['t0']}, 196608")
            e(f"s_add_u32 {S['t1']}, {S['t1']}, {S['wb']}")
            e(f"s_add_u32 m0, {S['mw']}, {p*16384 + h*2048}")
            e(f"buffer_load_dwordx4 {vWs[2]}, {srd(sWQ)}, {S['t1']} offen lds", tag=f"q{p}")
            e(f"buffer_load_dwordx4 {vWs[3]}, {srd(sWQ)}, {S['t1']} offen offset:1024 lds", tag=f"q{p}")

    e(f"v_lshlrev_b32 {vL16}, 4, {vL}")
    lz = k.lab("nz")
    e(f"s_cmp_ge_u32 s2, {NZ}")
    e(f"s_cbranch_scc1 {lz}")
    k.optional = True
    e("v_mov_b32 v24, 0\nv_mov_b32 v25, 0\nv_mov_b32 v26, 0\nv_mov_b32 v27, 0")
    e(f"v_lshlrev_b32 v28, 4, v0")
    e(f"s_lshl_b32 {S['t1']}, s2, 12")
    e(f"buffer_store_dwordx4 v[24:27], v28, {srd(sWS)}, {S['t1']} offen sc1")
    k.optional = False
    e(f"{lz}:")
    for s in range(4):
        dma_x(s)
        dma_wkv(s, True)
        if s == 0:
            e(f"s_getpc_b64 s[10:11]")
            e("L_pc:")
            e(f"s_lshl_b32 {S['t1']}, {S['j']}, 10")
            e(f"v_lshlrev_b32 v28, 7, {vL}")
            e(f"v_add_u32 v28, {S['t1']}, v28")
            e(f"v_min_u32 v28, L_end-L_pc, v28")
            lp = k.lab("npf")
            e(f"s_cmp_lg_u32 {S['w']}, 3")
            e(f"s_cbranch_scc1 {lp}")
            k.optional = True
            setexec(8)
            e(f"global_load_dword v29, v28, s[10:11]")
            setexec(64)
            k.optional = False
            e(f"{lp}:")
    for s in range(4, 8):
        dma_x(s)
    for n, p, sz in ((sWO, 8, 512*1024), (sWG, 12, 512*2752), (sWU, 14, 512*2752), (sWD, 16, 1376*1024),
                     (sOUT, 18, 2048*1024), (sDBG, 20, 256)):
        e(f"s_mov_b64 s[{n}:{n+1}], s[{p}:{p+1}]")
        e(f"s_mov_b32 s{n+2}, {sz}")
        e(f"s_mov_b32 s{n+3}, 0x20000")
    e(f"s_and_b32 {S['t0']}, {S['j']}, 3")
    e(f"s_lshr_b32 {S['ct']}, {S['j']}, 2")
    e(f"s_lshl2_add_u32 {S['rb2']}, {S['x']}, {S['t0']}")
    e(f"s_lshr_b32 {S['t2']}, {S['x']}, 1")
    e(f"s_lshl2_add_u32 {S['B']}, {S['t2']}, {S['t0']}")
    e(f"s_lshl3_add_u32 {S['c']}, {S['xp']}, {S['ct']}")
    e(f"s_lshl2_add_u32 {S['hd']}, {S['g']}, {S['w']}")
    e(f"v_lshlrev_b32 {vL4}, 2, {vL}")
    e(f"v_mov_b32 {vOne}, 1")
    e(f"v_and_b32 {vT0}, 7, {vL}")
    e(f"v_bfe_u32 {vT1}, {vL}, 3, 1")
    e(f"v_lshlrev_b32 {vT1}, 10, {vT1}")
    e(f"v_lshl_add_u32 {vT1}, {vT0}, 7, {vT1}")
    e(f"v_lshrrev_b32 {vT2}, 4, {vL}")
    e(f"v_and_b32 {vT0}, 6, {vT0}")
    e(f"v_xor_b32 {vT0}, {vT0}, {vT2}")
    e(f"v_lshl_add_u32 {vT1}, {vT0}, 4, {vT1}")
    e(f"v_add_u32 {vT1}, {S['mx']}, {vT1}")
    for i in range(4):
        e(f"v_xor_b32 {vXa[0][i]}, {i*2048}, {vT1}")
        e(f"v_xor_b32 {vXa[1][i]}, {i*2048 + 64}, {vT1}")
    e(f"v_bfe_u32 {vT0}, {vL}, 2, 2")
    e(f"v_and_b32 {vT1}, 2, {vT0}")
    e(f"v_and_b32 {vT3}, 1, {vT2}")
    e(f"v_lshl_or_b32 {vT1}, {vT3}, 2, {vT1}")
    e(f"v_bfe_u32 {vT3}, {vL}, 1, 1")
    e(f"s_lshl_b32 {S['t0']}, {S['w']}, 1")
    e(f"v_or_b32 {vT3}, {S['t0']}, {vT3}")
    e(f"v_xor_b32 {vT1}, {vT1}, {vT3}")
    e(f"v_lshlrev_b32 {vT1}, 4, {vT1}")
    e(f"v_lshl_add_u32 {vT1}, {vT0}, 7, {vT1}")
    e(f"v_lshl_add_u32 {vT1}, {vT2}, 12, {vT1}")
    e(f"v_and_b32 {vT3}, 1, {vL}")
    e(f"v_lshl_add_u32 {vT1}, {vT3}, 3, {vT1}")
    e(f"v_add_u32 {vWa}, {LR}, {vT1}")

    ONE = 24
    XF = [[28 + 16*b + 4*i for i in range(4)] for b in range(2)]
    WF = [[60 + 8*b + 4*m for m in range(2)] for b in range(2)]
    AK = [76 + 4*i for i in range(4)]
    AV = [92 + 4*i for i in range(4)]
    AQ = [108 + 4*i for i in range(4)]
    CK, CV, CQ, S1, GR = 124, 128, 132, 136, 140
    MEAN = [144 + 4*i for i in range(4)]
    RSTD = [160 + 4*i for i in range(4)]
    MQ, RQ = 176, 180
    vZF = "v184"
    def q4(n): return f"v[{n}:{n+3}]"
    for i in range(4):
        e(f"v_mov_b32 v{ONE+i}, 0x3f803f80")

    def rd_x(s, ks, b):
        return [(f"ds_read_b128 {q4(XF[b][i])}, {vXa[ks][i]} offset:{s*8192}", f"f{b}") for i in range(4)]
    def rd_w(slot, mat, ks, b, m):
        o = slot*16384 + mat*2048 + ks*1024
        r = WF[b][m]
        return [(f"ds_read_b64_tr_b16 v[{r}:{r+1}], {vWa} offset:{o}", f"f{b}"),
                (f"ds_read_b64_tr_b16 v[{r+2}:{r+3}], {vWa} offset:{o+512}", f"f{b}")]
    def mf16(d, a, b, first):
        return f"v_mfma_f32_16x16x32_bf16 {q4(d)}, {q4(a)}, {q4(b)}, {'0' if first else q4(d)}"

    def kv_mfmas(b, first):
        m = []
        for i in range(4):
            m.append(mf16(AK[i], XF[b][i], WF[b][0], first))
            m.append(mf16(AV[i], XF[b][i], WF[b][1], first))
        m.append(mf16(CK, ONE, WF[b][0], first))
        m.append(mf16(CV, ONE, WF[b][1], first))
        m.append(mf16(S1, XF[b][0], ONE, first))
        m.append(mf16(GR, XF[b][0], XF[b][0], first))
        return m
    def q_mfmas(b, first):
        m = [mf16(AQ[i], WF[b][0], XF[b][i], first) for i in range(4)]
        m.append(mf16(CQ, WF[b][0], ONE, first))
        return m

    k.wait(vm=["x0", "w0"])
    e("s_barrier")
    lz = k.lab("nz2")
    e(f"s_cmp_ge_u32 s2, {NZ}")
    e(f"s_cbranch_scc1 {lz}")
    def ann():
        setexec(1)
        e(f"buffer_atomic_add {vOne}, {vL4}, {srd(sDBG)}, 0 offen sc1")
        setexec(64)
    wave0(ann)
    e(f"{lz}:")
    stamp()
    for x in rd_w(0, 0, 0, 0, 0) + rd_w(0, 1, 0, 0, 1) + rd_x(0, 0, 0):
        e(x[0], tag=x[1])
    for s in range(8):
        slot = s % 4
        k.wait(lg="f0")
        interleave(k, kv_mfmas(0, s == 0), rd_w(slot, 0, 1, 1, 0) + rd_w(slot, 1, 1, 1, 1) + rd_x(s, 1, 1), per=1)
        nxt = [f"x{s+1}", f"w{s+1}"] if s < 7 else ["q0"]
        k.wait(vm=nxt, lg="all")
        e("s_barrier")
        if s < 7:
            fill = rd_w((s+1) % 4, 0, 0, 0, 0) + rd_w((s+1) % 4, 1, 0, 0, 1) + rd_x(s+1, 0, 0)
        else:
            fill = rd_w(0, 0, 0, 0, 0) + rd_x(0, 0, 0)
        if s < 4:
            fill.append(lambda s=s: dma_wkv(s + 4))
        else:
            fill.append(lambda s=s: dma_wq(s - 4))
        if s == 6:
            fill.append((f"buffer_load_dword {vZF}, off, {srd(sDBG)}, 0 sc1", "zf"))
        interleave(k, kv_mfmas(1, False), fill, per=1)
    vRs = ["v186", "v187", "v188", "v189"]
    def repack_loads():
        lw = k.lab("rpwd"); ld = k.lab("rpd")
        e(f"s_lshl_b32 {S['t2']}, {S['w']}, 12")
        e(f"s_add_u32 m0, {S['t2']}, {LS}")
        e(f"s_cmp_ge_u32 {S['u']}, 176")
        e(f"s_cbranch_scc1 {lw}")
        k.optional = True
        e(f"s_and_b32 {S['t0']}, {S['u']}, 7")
        e(f"s_lshl2_add_u32 {S['t0']}, {S['t0']}, {S['w']}")
        e(f"s_mul_i32 {S['t0']}, {S['t0']}, {16*2752}")
        e(f"s_lshr_b32 {S['t1']}, {S['u']}, 3")
        e(f"s_lshl_b32 {S['t1']}, {S['t1']}, 7")
        e(f"s_add_u32 {S['t0']}, {S['t0']}, {S['t1']}")
        e(f"v_lshrrev_b32 {vT0}, 3, {vL}")
        e(f"v_and_b32 {vT1}, 7, {vL}")
        e(f"v_mul_u32_u24 {vT0}, 2752, {vT0}")
        e(f"v_lshl_add_u32 {vRs[0]}, {vT1}, 4, {vT0}")
        e(f"v_add_u32 {vRs[1]}, {8*2752 - 1024}, {vRs[0]}")
        e(f"buffer_load_dwordx4 {vRs[0]}, {srd(sWG)}, {S['t0']} offen lds")
        e(f"buffer_load_dwordx4 {vRs[1]}, {srd(sWG)}, {S['t0']} offen offset:1024 lds")
        e(f"s_add_u32 m0, m0, 2048")
        e(f"s_nop 0")
        e(f"buffer_load_dwordx4 {vRs[0]}, {srd(sWU)}, {S['t0']} offen lds")
        e(f"buffer_load_dwordx4 {vRs[1]}, {srd(sWU)}, {S['t0']} offen offset:1024 lds")
        e(f"s_branch {ld}")
        e(f"{lw}:")
        e(f"s_sub_u32 {S['t0']}, {S['u']}, 176")
        e(f"s_lshl_b32 {S['t0']}, {S['t0']}, 14")
        e(f"s_add_u32 {S['t0']}, {S['t0']}, {S['t2']}")
        k.optional = False
        for i in range(4):
            e(f"buffer_load_dwordx4 {vL16}, {srd(sWD)}, {S['t0']} offen offset:{i*1024} lds", tag="rp")
        e(f"{ld}:")
    e(f"s_mov_b32 {S['u']}, s2")
    repack_loads()
    stamp()

    e(f"v_and_b32 {vT0}, 3, {vL}")
    e(f"v_cmp_eq_u32 vcc, 1, {vT0}")
    e(f"v_cndmask_b32 v{S1}, v{S1}, v{S1+1}, vcc")
    e(f"v_cndmask_b32 v{GR}, v{GR}, v{GR+1}, vcc")
    e(f"v_cmp_eq_u32 vcc, 2, {vT0}")
    e(f"v_cndmask_b32 v{S1}, v{S1}, v{S1+2}, vcc")
    e(f"v_cndmask_b32 v{GR}, v{GR}, v{GR+2}, vcc")
    e(f"v_cmp_eq_u32 vcc, 3, {vT0}")
    e(f"v_cndmask_b32 v{S1}, v{S1}, v{S1+3}, vcc")
    e(f"v_cndmask_b32 v{GR}, v{GR}, v{GR+3}, vcc")
    e(f"v_mul_f32 v{S1}, {f2u(1/512)}, v{S1}")
    e(f"v_mul_f32 v{S1+1}, v{S1}, v{S1}")
    e(f"v_fma_f32 v{S1+1}, -v{S1+1}, 1.0, 0")
    e(f"v_fmamk_f32 v{GR}, v{GR}, {f2u(1/512)}, v{S1+1}")
    e(f"v_max_f32 v{GR}, 0, v{GR}")
    e(f"v_add_f32 v{GR}, {f2u(1e-5)}, v{GR}")
    e(f"v_rsq_f32 v{GR}, v{GR}")
    e(f"v_and_b32 {vT0}, 15, {vL}")
    e(f"s_lshl_b32 {S['t0']}, {S['w']}, 6")
    e(f"s_add_u32 {S['t0']}, {S['t0']}, {LM}")
    e(f"v_lshl_add_u32 {vT1}, {vT0}, 2, {S['t0']}")
    e("s_mov_b32 exec_lo, 0x00f0000f")
    e("s_mov_b32 exec_hi, 0xf0000f00")
    e(f"ds_write_b32 {vT1}, v{S1}", tag="sw")
    e(f"ds_write_b32 {vT1}, v{GR} offset:256", tag="sw")
    e("s_mov_b64 exec, -1")
    k.wait(vm="zf")
    e(f"v_readfirstlane_b32 {S['t1']}, {vZF}")
    lok = k.lab("zok")
    e(f"s_cmp_ge_u32 {S['t1']}, {NZ}")
    e(f"s_cbranch_scc1 {lok}")
    k.optional = True
    e(f"v_mov_b32 {vT3}, 0")
    poll(vT3, "0", 1, NZ, vZF, srdn=sDBG)
    k.optional = False
    e(f"{lok}:")
    k.wait(lg="sw")
    e("s_barrier")
    e(f"v_lshrrev_b32 {vT2}, 4, {vL}")
    e(f"v_lshl_add_u32 {vT2}, {vT2}, 4, {S['t0']}")
    for i in range(4):
        e(f"v_xor_b32 {vT3}, {i*64}, {vT2}")
        e(f"ds_read_b128 {q4(MEAN[i])}, {vT3}", tag="st")
        e(f"ds_read_b128 {q4(RSTD[i])}, {vT3} offset:256", tag="st")
    for i in range(4):
        e(f"v_xor_b32 {vT3}, {i*64}, {vT1}")
        e(f"ds_read_b32 v{MQ+i}, {vT3}", tag="st2")
        e(f"ds_read_b32 v{RQ+i}, {vT3} offset:256", tag="st2")
    e(f"s_mov_b32 {S['t4']}, {f2u(LOG2E)}")
    e(f"s_mov_b32 {S['t5']}, {f2u(1e-6)}")

    def phi_ops(acc, mean, rstd, cs, tmp):
        return [f"v_fma_f32 v{acc}, -v{mean}, v{cs}, v{acc}",
                f"v_fmaak_f32 v{acc}, v{acc}, v{rstd}, {f2u(1e-6)}",
                f"v_mul_f32 v{tmp}, {S['t4']}, v{acc}",
                f"v_max_f32 v{acc}, {S['t5']}, v{acc}",
                f"v_exp_f32_e64 v{tmp}, v{tmp} clamp",
                None,
                f"v_add_f32 v{acc}, v{acc}, v{tmp}"]
    def emit_grouped(groups):
        n = len(groups[0])
        for j in range(n):
            for gp in groups:
                if gp[j]:
                    e(gp[j])

    k.wait(lg="st")
    TMP = 190
    for i in range(4):
        emit_grouped([phi_ops(AK[i] + r, MEAN[i] + r, RSTD[i] + r, CK, TMP + r) for r in range(4)])
        for r in range(4):
            e(f"v_fma_f32 v{AV[i]+r}, -v{MEAN[i]+r}, v{CV}, v{AV[i]+r}")
        for r in range(4):
            e(f"v_mul_f32 v{AV[i]+r}, v{AV[i]+r}, v{RSTD[i]+r}")
    PK, PV = 208, 216
    for i in range(4):
        for h in range(2):
            e(f"v_cvt_pk_bf16_f32 v{PK + 2*i + h}, v{AK[i] + 2*h}, v{AK[i] + 2*h + 1}")
            e(f"v_cvt_pk_bf16_f32 v{PV + 2*i + h}, v{AV[i] + 2*h}, v{AV[i] + 2*h + 1}")
    KVT, ZZ = 224, 228
    e(mf16(KVT, PV, PK, True))
    e(mf16(ZZ, ONE, PK, True))
    e(mf16(KVT, PV + 4, PK + 4, False))
    e(mf16(ZZ, ONE, PK + 4, False))
    e(f"s_mul_i32 {S['t0']}, {S['hd']}, 1152")
    def kv_atomics():
        for r in range(4):
            e(f"buffer_atomic_add_f32 v{KVT+r}, {vL4}, {srd(sWS)}, {S['t0']} offen offset:{r*256}", tag="at")
        setexec(16)
        e(f"buffer_atomic_add_f32 v{ZZ}, {vL4}, {srd(sWS)}, {S['t0']} offen offset:1024", tag="at")
        setexec(64)
    kv_atomics()
    stamp()

    for s in range(8):
        p, h = s // 2, s % 2
        k.wait(lg="f0")
        interleave(k, q_mfmas(0, s == 0), rd_w(p, h, 1, 1, 0) + rd_x(s, 1, 1), per=2)
        if s < 7:
            if h == 1:
                k.wait(vm=f"q{p+1}", lg="all")
                e("s_barrier")
            else:
                k.wait(lg="f1")
            p2, h2 = (s+1) // 2, (s+1) % 2
            fill = rd_w(p2, h2, 0, 0, 0) + rd_x(s+1, 0, 0)
        else:
            k.wait(lg="all")
            e("s_barrier")
            fill = []
        interleave(k, q_mfmas(1, False), fill, per=2)
    vPQs = "v185"
    e(f"v_lshrrev_b32 {vT0}, 4, {vL}")
    e(f"v_xor_b32 {vT1}, {S['w']}, {vT0}")
    e(f"v_and_b32 {vT1}, 1, {vT1}")
    e(f"v_and_b32 {vT2}, 15, {vL}")
    e(f"v_lshl_add_u32 {vT1}, {vT1}, 4, {vT2}")
    e(f"v_lshlrev_b32 {vT1}, 5, {vT1}")
    e(f"v_lshrrev_b32 {vT0}, 5, {vL}")
    e(f"v_lshl_add_u32 {vPQs}, {vT0}, 4, {vT1}")
    e(f"s_lshr_b32 {S['t0']}, {S['w']}, 1")
    e(f"s_lshl1_add_u32 {S['t0']}, {S['rb1']}, {S['t0']}")
    e(f"s_lshl_b32 {S['t0']}, {S['t0']}, 5")
    e(f"s_add_u32 {S['t0']}, {S['t0']}, {S['hd']}")
    e(f"s_lshl_b32 {S['t0']}, {S['t0']}, 10")
    e(f"s_add_u32 {S['t0']}, {S['t0']}, {PQ_OFF}")
    e(f"s_xor_b32 {S['t1']}, {S['t0']}, {32*1024}")
    for pr in range(2):
        emit_grouped([phi_ops(AQ[i] + r, MQ + i, RQ + i, CQ + r, TMP + 4*(i & 1) + r) for i in (2*pr, 2*pr+1) for r in range(4)])
        o = PK + 4*pr
        for ii in range(2):
            for h in range(2):
                e(f"v_cvt_pk_bf16_f32 v{o + 2*ii + h}, v{AQ[2*pr+ii] + 2*h}, v{AQ[2*pr+ii] + 2*h + 1}")
        e(f"v_permlane16_swap_b32 v{o}, v{o+2}")
        e(f"v_permlane16_swap_b32 v{o+1}, v{o+3}")
        e(f"buffer_store_dwordx4 {q4(o)}, {vPQs}, {srd(sWS)}, {S['t0'] if pr == 0 else S['t1']} offen sc1", tag="pqs")
    vWo = ["v186", "v187", "v188", "v189"]
    e(f"v_lshrrev_b32 {vT0}, 3, {vL}")
    e(f"v_and_b32 {vT1}, 7, {vL}")
    e(f"v_and_b32 {vT2}, 2, {vT0}")
    e(f"v_lshlrev_b32 {vT2}, 1, {vT2}")
    e(f"v_xor_b32 {vT1}, {vT1}, {vT2}")
    e(f"v_lshlrev_b32 {vT1}, 4, {vT1}")
    e(f"v_lshl_add_u32 {vWo[0]}, {vT0}, 10, {vT1}")
    for b in range(1, 4):
        e(f"v_add_u32 {vWo[b]}, {b*7168}, {vWo[0]}")
    e(f"s_lshl_b32 {S['t2']}, {S['w']}, 17")
    e(f"s_lshl_b32 {S['t3']}, {S['ct']}, 7")
    e(f"s_add_u32 {S['t2']}, {S['t2']}, {S['t3']}")
    e(f"s_lshl_b32 {S['t3']}, {S['w']}, 14")
    e(f"s_add_u32 m0, {S['t3']}, {LR}")
    for gq in range(4):
        if gq:
            e(f"s_add_u32 {S['t2']}, {S['t2']}, 32768")
            e(f"s_add_u32 m0, m0, 4096")
        for b in range(4):
            e(f"buffer_load_dwordx4 {vWo[b]}, {srd(sWO)}, {S['t2']} offen offset:{b*1024} lds", tag="wo")
    XR = 232
    vRes = "v240"
    e(f"v_and_b32 {vT0}, 31, {vL}")
    e(f"v_lshrrev_b32 {vT1}, 5, {vL}")
    e(f"v_lshlrev_b32 {vT1}, 5, {vT1}")
    e(f"v_lshl_add_u32 {vRes}, {vT0}, 10, {vT1}")
    e(f"s_and_b32 {S['t0']}, {S['w']}, 1")
    e(f"s_lshl1_add_u32 {S['t0']}, {S['rb2']}, {S['t0']}")
    e(f"s_lshl_b32 {S['res']}, {S['t0']}, 15")
    e(f"s_lshr_b32 {S['t1']}, {S['w']}, 1")
    e(f"s_lshl1_add_u32 {S['t1']}, {S['ct']}, {S['t1']}")
    e(f"s_lshl_b32 {S['t1']}, {S['t1']}, 6")
    e(f"s_add_u32 {S['res']}, {S['res']}, {S['t1']}")
    e(f"buffer_load_dwordx4 {q4(XR)}, {vRes}, {srd(sX)}, {S['res']} offen", tag="xr")
    e(f"buffer_load_dwordx4 {q4(XR+4)}, {vRes}, {srd(sX)}, {S['res']} offen offset:16", tag="xr")
    vSig = "v241"
    e(f"s_lshl_b32 {S['t0']}, {S['g']}, 7")
    e(f"v_lshlrev_b32 {vSig}, 10, {vL}")
    e(f"v_add_u32 {vSig}, {S['t0']}, {vSig}")
    e(f"s_add_u32 {S['t0']}, {S['rb1']}, {C_PQ}")
    e(f"s_lshl_b32 {S['t0']}, {S['t0']}, 7")
    e(f"v_mov_b32 {vT0}, {S['t0']}")
    e(f"v_cmp_gt_u32 vcc, 8, {vL}")
    e(f"v_cndmask_b32 {vSig}, {vT0}, {vSig}, vcc")
    e(f"s_mov_b32 {S['t1']}, {CNT}")
    k.wait(vm="pqs")
    e("s_barrier")
    def sig1():
        setexec(9)
        e(f"buffer_atomic_add {vOne}, {vSig}, {srd(sWS)}, {S['t1']} offen sc1")
        setexec(64)
    wave0(sig1)
    stamp()

    RF = 28
    def repack_body():
        lw = k.lab("rbwd"); ld = k.lab("rbd"); lsk = k.lab("rbs")
        e(f"v_bfe_u32 {vT0}, {vL}, 2, 2")
        e(f"v_lshrrev_b32 {vT1}, 5, {vL}")
        e(f"v_bfe_u32 {vT2}, {vL}, 4, 1")
        e(f"s_cmp_ge_u32 {S['u']}, 176")
        e(f"s_cbranch_scc1 {lw}")
        k.optional = True
        e(f"v_lshlrev_b32 {vT0}, 7, {vT0}")
        e(f"v_lshl_add_u32 {vT0}, {vT1}, 12, {vT0}")
        e(f"v_lshl_add_u32 {vT0}, {vT2}, 4, {vT0}")
        e(f"v_bfe_u32 {vT2}, {vL}, 1, 1")
        e(f"v_lshl_add_u32 {vT0}, {vT2}, 11, {vT0}")
        e(f"v_and_b32 {vT2}, 1, {vL}")
        e(f"v_lshl_add_u32 {vT0}, {vT2}, 3, {vT0}")
        e(f"s_lshl_b32 {S['t0']}, {S['w']}, 5")
        e(f"s_add_u32 {S['t0']}, {S['t0']}, {LS}")
        e(f"v_add_u32 {vT0}, {S['t0']}, {vT0}")
        e(f"s_lshr_b32 {S['t1']}, {S['u']}, 3")
        e(f"s_lshl2_add_u32 {S['t1']}, {S['t1']}, {S['w']}")
        e(f"s_cmp_ge_u32 {S['t1']}, 86")
        e(f"s_cbranch_scc1 {ld}")
        for ks in range(4):
            o = (ks >> 1)*8192 + (ks & 1)*1024
            e(f"ds_read_b64_tr_b16 v[{RF+4*ks}:{RF+4*ks+1}], {vT0} offset:{o}")
            e(f"ds_read_b64_tr_b16 v[{RF+4*ks+2}:{RF+4*ks+3}], {vT0} offset:{o+512}")
        e(f"s_and_b32 {S['t2']}, {S['u']}, 7")
        e(f"s_lshl3_add_u32 {S['t2']}, {S['t1']}, {S['t2']}")
        e(f"s_lshl_b32 {S['t2']}, {S['t2']}, 12")
        e(f"s_add_u32 {S['t2']}, {S['t2']}, {W3_OFF}")
        e(f"s_lshl_b32 {S['t1']}, {S['t1']}, 7")
        e(f"s_add_u32 {S['t1']}, {S['t1']}, {CS_OFF}")
        e("s_waitcnt lgkmcnt(0)")
        for ks in range(4):
            e(f"buffer_store_dwordx4 {q4(RF+4*ks)}, {vL16}, {srd(sWS)}, {S['t2']} offen offset:{ks*1024} sc1")
            e(f"v_mfma_f32_32x32x16_bf16 v[44:59], {q4(ONE)}, {q4(RF+4*ks)}, {'0' if ks == 0 else 'v[44:59]'}")
        setexec(32)
        e(f"buffer_atomic_add_f32 v44, {vL4}, {srd(sWS)}, {S['t1']} offen")
        setexec(64)
        e(f"s_branch {ld}")
        e(f"{lw}:")
        e(f"v_lshl_add_u32 {vT0}, {vT1}, 2, {vT0}")
        e(f"v_lshlrev_b32 {vT0}, 10, {vT0}")
        e(f"v_lshl_add_u32 {vT0}, {vT2}, 4, {vT0}")
        e(f"v_bfe_u32 {vT2}, {vL}, 1, 1")
        e(f"v_lshl_add_u32 {vT0}, {vT2}, 3, {vT0}")
        e(f"v_and_b32 {vT2}, 1, {vL}")
        e(f"v_lshl_add_u32 {vT0}, {vT2}, 5, {vT0}")
        e(f"s_lshl_b32 {S['t0']}, {S['w']}, 8")
        e(f"s_add_u32 {S['t0']}, {S['t0']}, {LS}")
        e(f"v_add_u32 {vT0}, {S['t0']}, {vT0}")
        for i in range(4):
            e(f"ds_read_b64_tr_b16 v[{RF+4*i}:{RF+4*i+1}], {vT0} offset:{i*64}")
            e(f"ds_read_b64_tr_b16 v[{RF+4*i+2}:{RF+4*i+3}], {vT0} offset:{i*64+8192}")
        e(f"s_sub_u32 {S['t2']}, {S['u']}, 176")
        e(f"s_lshl2_add_u32 {S['t2']}, {S['t2']}, {S['w']}")
        e(f"s_lshl_b32 {S['t2']}, {S['t2']}, 12")
        e(f"s_add_u32 {S['t2']}, {S['t2']}, {WD_OFF}")
        e("s_waitcnt lgkmcnt(0)")
        for i in range(4):
            e(f"buffer_store_dwordx4 {q4(RF+4*i)}, {vL16}, {srd(sWS)}, {S['t2']} offen offset:{i*1024} sc1")
        k.optional = False
        e(f"{ld}:")
    repack_body()
    l2 = k.lab("rp2")
    e(f"s_cmp_lt_u32 s2, 250")
    e(f"s_cbranch_scc1 {l2}")
    e(f"s_add_u32 {S['u']}, s2, 6")
    e("s_barrier")
    repack_loads()
    k.optional = True
    e("s_waitcnt vmcnt(0)")
    k.optional = False
    e("s_barrier")
    repack_body()
    e(f"{l2}:")
    vOa = ["v186", "v187"]
    e(f"v_bfe_u32 {vT0}, {vL}, 2, 2")
    e(f"v_lshrrev_b32 {vT1}, 5, {vL}")
    e(f"v_lshlrev_b32 {vT1}, 10, {vT1}")
    e(f"v_lshl_add_u32 {vT1}, {vT0}, 7, {vT1}")
    e(f"v_lshrrev_b32 {vT0}, 1, {vT0}")
    e(f"s_lshr_b32 {S['t0']}, {S['w']}, 1")
    e(f"v_xor_b32 {vT0}, {S['t0']}, {vT0}")
    e(f"v_lshl_add_u32 {vT1}, {vT0}, 6, {vT1}")
    e(f"v_and_b32 {vT0}, 1, {vL}")
    e(f"v_lshl_add_u32 {vT1}, {vT0}, 5, {vT1}")
    e(f"v_bfe_u32 {vT0}, {vL}, 4, 1")
    e(f"v_lshl_add_u32 {vT1}, {vT0}, 4, {vT1}")
    e(f"v_bfe_u32 {vT0}, {vL}, 1, 1")
    e(f"v_lshl_add_u32 {vT1}, {vT0}, 3, {vT1}")
    e(f"s_lshl_b32 {S['t0']}, {S['w']}, 14")
    e(f"s_add_u32 {S['t0']}, {S['t0']}, {LR}")
    e(f"v_add_u32 {vOa[0]}, {S['t0']}, {vT1}")
    e(f"v_xor_b32 {vOa[1]}, 64, {vOa[0]}")
    e("s_waitcnt vmcnt(0)")
    e("s_barrier")
    e(f"s_lshr_b32 {S['t0']}, s2, 5")
    e(f"s_add_u32 {S['t0']}, {S['t0']}, {C_RP}")
    e(f"s_lshl_b32 {S['t0']}, {S['t0']}, 7")
    e(f"s_add_u32 {S['t0']}, {S['t0']}, {CNT}")
    e(f"v_lshlrev_b32 {vSig}, 10, {vL}")
    def sig2():
        setexec(8)
        e(f"buffer_atomic_add {vOne}, {vSig}, {srd(sWS)}, {S['t0']} offen sc1")
        setexec(64)
    wave0(sig2)
    for hh in range(8):
        for n in range(2):
            a = hh*8 + n*4
            e(f"ds_read_b64_tr_b16 a[{a}:{a+1}], {vOa[n]} offset:{hh*2048}", tag="wof")
            e(f"ds_read_b64_tr_b16 a[{a+2}:{a+3}], {vOa[n]} offset:{hh*2048+512}", tag="wof")
    stamp()

    vL128 = "v242"
    vPT = "v243"
    e(f"v_lshlrev_b32 {vL128}, 7, {vL}")
    vPQl, vKVl = "v244", "v245"
    e(f"v_and_b32 {vT0}, 31, {vL}")
    e(f"v_lshrrev_b32 {vT1}, 5, {vL}")
    e(f"v_lshlrev_b32 {vT2}, 4, {vT1}")
    e(f"v_lshl_add_u32 {vPQl}, {vT0}, 5, {vT2}")
    e(f"v_and_b32 {vT2}, 3, {vL}")
    e(f"v_lshlrev_b32 {vT2}, 2, {vT2}")
    e(f"v_bfe_u32 {vT3}, {vL}, 2, 1")
    e(f"v_lshl_add_u32 {vT2}, {vT3}, 1, {vT2}")
    e(f"v_bfe_u32 {vT3}, {vL}, 3, 1")
    e(f"v_add_u32 {vT2}, {vT2}, {vT3}")
    e(f"v_cmp_gt_u32 vcc, 16, {vT0}")
    e(f"v_cndmask_b32 {vT2}, 16, {vT2}, vcc")
    e(f"v_lshlrev_b32 {vT2}, 6, {vT2}")
    e(f"v_lshl_add_u32 {vKVl}, {vT1}, 5, {vT2}")
    e(f"s_and_b32 {S['t0']}, {S['w']}, 1")
    e(f"s_lshl1_add_u32 {S['t0']}, {S['rb2']}, {S['t0']}")
    e(f"s_lshl2_add_u32 {S['t0']}, {S['t0']}, {S['w']}")
    e(f"s_lshl_b32 {S['t0']}, {S['t0']}, 13")
    e(f"s_add_u32 {S['s0']}, {S['t0']}, {PQ_OFF}")
    e(f"s_xor_b32 {S['s1']}, {S['s0']}, {32*1024}")
    e(f"s_add_u32 {S['s2']}, {S['s0']}, 4096")
    e(f"s_add_u32 {S['s3']}, {S['s1']}, 4096")
    e(f"s_add_u32 {S['t2']}, {S['rb2']}, {C_PQ}")
    e(f"s_lshl_b32 {S['t2']}, {S['t2']}, 7")
    e(f"s_add_u32 {S['t2']}, {S['t2']}, {CNT}")
    wave0(lambda: poll(vL128, S['t2'], 1, 8, vPT))
    e("s_barrier")
    stamp()
    PQF = lambda sp, hh: 64 + hh*8 + sp*4
    for hh in range(8):
        for sp in range(2):
            so = S[['s0', 's1', 's2', 's3'][sp + 2*(hh >> 2)]]
            a = PQF(sp, hh)
            e(f"buffer_load_dwordx4 a[{a}:{a+3}], {vPQl}, {srd(sWS)}, {so} offen offset:{(hh & 3)*1024} sc1", tag=f"pq{hh}")
    e(f"s_lshl_b32 {S['t2']}, {S['x']}, 10")
    e(f"s_add_u32 {S['t2']}, {S['t2']}, {CNT + C_KV*128}")
    wave0(lambda: poll(vL128, S['t2'], 8, 32, vPT))
    e("s_barrier")
    stamp()
    KR = 28
    KF = 92
    e(f"s_mul_i32 {S['t0']}, {S['w']}, {8*1152}")
    e(f"s_add_u32 {S['t1']}, {S['t0']}, {4*1152}")
    for hh in range(8):
        for h in range(2):
            e(f"buffer_load_dwordx4 {q4(KR + 8*hh + 4*h)}, {vKVl}, {srd(sWS)}, {S['t0'] if hh < 4 else S['t1']} offen offset:{(hh & 3)*1152 + 16*h} sc1", tag=f"kv{hh}")
    e(f"s_lshr_b32 {S['t2']}, 0x1133, {S['c']}")
    e(f"s_and_b32 {S['t2']}, {S['t2']}, 1")
    e(f"s_add_u32 {S['sz3']}, {S['t2']}, 5")
    e(f"s_lshl_b32 {S['t2']}, 1, {S['c']}")
    e(f"s_sub_u32 {S['t2']}, {S['t2']}, 1")
    e(f"s_and_b32 {S['t2']}, {S['t2']}, 0x1133")
    e(f"s_bcnt1_i32_b32 {S['t2']}, {S['t2']}")
    e(f"s_mul_i32 {S['st3']}, {S['c']}, 5")
    e(f"s_add_u32 {S['st3']}, {S['st3']}, {S['t2']}")
    e(f"s_lshl_b32 {S['t2']}, {S['x']}, 10")
    e(f"s_add_u32 {S['t2']}, {S['t2']}, {CNT + C_RP*128}")
    wave0(lambda: poll(vL128, S['t2'], 8, 32, vPT))
    k.wait(lg="wof")
    e("s_barrier")
    SLOT = [32768, 65536, 98304, 0, 32768, 65536]
    def dma_w3(t):
        e(f"s_add_u32 {S['t2']}, {S['st3']}, {t}")
        e(f"s_lshl2_add_u32 {S['t2']}, {S['t2']}, {S['w']}")
        e(f"s_lshl_b32 {S['t2']}, {S['t2']}, 13")
        e(f"s_add_u32 {S['t2']}, {S['t2']}, {W3_OFF}")
        e(f"s_lshl_b32 {S['t3']}, {S['w']}, 13")
        e(f"s_add_u32 m0, {S['t3']}, {SLOT[t]}")
        for hq in range(2):
            if hq:
                e(f"s_add_u32 {S['t2']}, {S['t2']}, 4096")
                e(f"s_add_u32 m0, m0, 4096")
            for i in range(4):
                e(f"buffer_load_dwordx4 {vL16}, {srd(sWS)}, {S['t2']} offen offset:{i*1024} sc1 lds", tag=f"w3_{t}")
    for t in range(3):
        dma_w3(t)
    for hh in range(8):
        k.wait(vm=f"kv{hh}")
        for h in range(4):
            e(f"v_cvt_pk_bf16_f32 v{KF + 4*hh + h}, v{KR + 8*hh + 2*h}, v{KR + 8*hh + 2*h + 1}")
    DB = [28, 44, 60]
    OF = [76, 80]
    ACC = [124 + 16*d for d in range(4)]
    def q16(n): return f"v[{n}:{n+15}]"
    def s1(n):
        hh, sp = n >> 1, n & 1
        a = PQF(sp, hh)
        return f"v_mfma_f32_32x32x16_bf16 {q16(DB[n % 3])}, {q4(KF + 4*hh)}, a[{a}:{a+3}], 0"
    def s2(n, nn):
        hh, sp = n >> 1, n & 1
        a = hh*8 + nn*4
        d = ACC[2*nn + sp]
        return f"v_mfma_f32_32x32x16_bf16 {q16(d)}, a[{a}:{a+3}], {q4(OF[n & 1])}, {'0' if hh == 0 else q16(d)}"
    def vv(n):
        D = DB[n % 3]; o = OF[n & 1]
        r = [f"v_add_f32 v{D+8}, {S['t5']}, v{D+8}", f"v_rcp_f32 v{D+8}, v{D+8}"]
        r += [f"v_mul_f32 v{D+j}, v{D+j}, v{D+8}" for j in range(8)]
        r += [f"v_cvt_pk_bf16_f32 v{o+j}, v{D+2*j}, v{D+2*j+1}" for j in range(4)]
        return r
    e(f"s_mov_b32 {S['t5']}, {f2u(1e-6)}")
    e(s1(0)); e(s1(1))
    for n in range(16):
        v = vv(n)
        mf = []
        if n > 0:
            mf += [s2(n-1, 0), s2(n-1, 1)]
        if n + 2 < 16:
            mf += [s1(n+2)]
        interleave(k, mf, v, per=5)
    e(s2(15, 0)); e(s2(15, 1))

    def reduce_tiles():
        e(f"s_lshl_b32 {S['t0']}, {S['w']}, 12")
        e(f"v_add_u32 {vT0}, {S['t0']}, {vL16}")
        e(f"v_add_u32 {vT1}, {LS}, {vT0}")
        for d in (1, 2, 3):
            for a in range(4):
                if d < 3:
                    e(f"ds_write_b128 {vT0}, {q4(ACC[d] + 4*a)} offset:{(d-1)*16384 + a*1024}", tag="rw")
                else:
                    e(f"ds_write_b128 {vT1}, {q4(ACC[d] + 4*a)} offset:{a*1024}", tag="rw")
        e(f"v_xor_b32 {vT2}, {1*4096}, {vT0}")
        e(f"v_xor_b32 {vT3}, {2*4096}, {vT0}")
        e(f"v_xor_b32 {vT1}, {3*4096}, {vT1}")
        k.wait(lg="rw")
        e("s_barrier")
        for d, vb, o in ((1, vT2, 0), (2, vT3, 16384), (3, vT1, 0)):
            for a in range(4):
                e(f"ds_read_b128 {q4(ACC[d] + 4*a)}, {vb} offset:{o + a*1024}", tag=f"rr{d}")
        for d in (1, 2, 3):
            k.wait(lg=f"rr{d}")
            for j in range(16):
                e(f"v_add_f32 v{ACC[0]+j}, v{ACC[0]+j}, v{ACC[d]+j}")
    reduce_tiles()
    HB = 232
    A0 = ACC[0]
    for j in range(8):
        e(f"v_lshlrev_b32 v{ACC[1]+2*j}, 16, v{XR+j}")
        e(f"v_and_b32 v{ACC[1]+2*j+1}, 0xffff0000, v{XR+j}")
    for j in range(16):
        e(f"v_add_f32 v{A0+j}, v{A0+j}, v{ACC[1]+j}")
    for j in range(8):
        e(f"v_cvt_pk_bf16_f32 v{HB+j}, v{A0+2*j}, v{A0+2*j+1}")
    e(f"s_and_b32 {S['t0']}, {S['w']}, 1")
    e(f"s_lshl1_add_u32 {S['t0']}, {S['rb2']}, {S['t0']}")
    e(f"s_lshr_b32 {S['t1']}, {S['w']}, 1")
    e(f"s_lshl1_add_u32 {S['t1']}, {S['ct']}, {S['t1']}")
    e(f"s_lshl4_add_u32 {S['t0']}, {S['t0']}, {S['t1']}")
    e(f"s_lshl_b32 {S['t1']}, {S['t0']}, 11")
    e(f"s_add_u32 {S['t1']}, {S['t1']}, {HP_OFF}")
    e(f"s_lshl_b32 {S['t0']}, {S['t0']}, 8")
    e(f"s_add_u32 {S['t0']}, {S['t0']}, {ST_OFF}")
    e(f"buffer_store_dwordx4 {q4(HB)}, {vL16}, {srd(sWS)}, {S['t1']} offen sc1", tag="hs")
    e(f"buffer_store_dwordx4 {q4(HB+4)}, {vL16}, {srd(sWS)}, {S['t1']} offen offset:1024 sc1", tag="hs")
    sa, sb, sc, sd = ACC[2], ACC[2]+1, ACC[2]+2, ACC[2]+3
    e(f"v_add_f32 v{sa}, v{A0}, v{A0+1}")
    e(f"v_mul_f32 v{sb}, v{A0}, v{A0}")
    e(f"v_add_f32 v{sc}, v{A0+2}, v{A0+3}")
    e(f"v_mul_f32 v{sd}, v{A0+1}, v{A0+1}")
    for j in range(2, 16, 2):
        if j >= 4:
            e(f"v_add_f32 v{sa}, v{sa}, v{A0+j}")
            e(f"v_add_f32 v{sc}, v{sc}, v{A0+j+1}")
        e(f"v_fmac_f32 v{sb}, v{A0+j}, v{A0+j}")
        e(f"v_fmac_f32 v{sd}, v{A0+j+1}, v{A0+j+1}")
    e(f"v_add_f32 v{sa}, v{sa}, v{sc}")
    e(f"v_add_f32 v{sb}, v{sb}, v{sd}")
    e(f"v_permlane32_swap_b32 v{sa}, v{sb}")
    e(f"v_add_f32 v{sa}, v{sa}, v{sb}")
    e(f"buffer_store_dword v{sa}, {vL4}, {srd(sWS)}, {S['t0']} offen sc1", tag="hs")
    e(f"s_lshr_b32 {S['t0']}, {S['rb2']}, 1")
    e(f"s_lshl_b32 {S['t0']}, {S['t0']}, 8")
    e(f"s_add_u32 {S['t0']}, {S['t0']}, {CNT + C_H*128}")
    k.wait(vm="hs")
    e("s_barrier")
    def sig3():
        setexec(2)
        e(f"buffer_atomic_add {vOne}, {vL128}, {srd(sWS)}, {S['t0']} offen sc1")
        setexec(64)
    wave0(sig3)
    stamp()
    dma_w3(3)

    def HF(ks):
        return f"a[{176 + 4*ks}:{179 + 4*ks}]" if ks < 20 else q4(28 + 4*(ks - 20))
    AC3 = [76, 92, 108]
    W3F = [124 + 4*i for i in range(6)]
    CSR = [148, 164]
    STT = 180
    ET = 196
    GO = [220, 224]
    vMean, vC1, vC3, vV = "v228", "v229", "v230", "v231"
    vLH = "v246"
    vHF = "v247"
    e(f"v_add_u32 {vLH}, 0x10000, {vL16}")
    e(f"v_lshrrev_b32 {vHF}, 5, {vL}")
    e(f"v_lshlrev_b32 {vHF}, 4, {vHF}")
    e(f"s_lshl2_add_u32 {S['rt']}, {S['B']}, {S['w']}")
    e(f"s_lshl_b32 {S['t1']}, {S['rt']}, 15")
    e(f"s_add_u32 {S['t1']}, {S['t1']}, {HP_OFF}")
    e(f"s_lshl1_add_u32 {S['t2']}, {S['B']}, {S['xp']}")
    e(f"s_lshl_b32 {S['t2']}, {S['t2']}, 7")
    e(f"s_add_u32 {S['t2']}, {S['t2']}, {CNT + C_H*128}")
    k.wait(vm="w3_2")
    wave0(lambda: poll(vL128, S['t2'], 1, 16, vPT, presleep=4))
    e("s_barrier")
    stamp()
    for ks in range(32):
        if ks and ks % 4 == 0:
            e(f"s_add_u32 {S['t1']}, {S['t1']}, 4096")
        e(f"buffer_load_dwordx4 {HF(ks)}, {vL16}, {srd(sWS)}, {S['t1']} offen offset:{(ks % 4)*1024} sc1", tag=f"h{ks}")
    e(f"s_lshl_b32 {S['t1']}, {S['rt']}, 12")
    e(f"s_add_u32 {S['t1']}, {S['t1']}, {ST_OFF}")
    for n in range(16):
        e(f"buffer_load_dword v{STT+n}, {vL4}, {srd(sWS)}, {S['t1']} offen offset:{n*256} sc1", tag="sts")
    e(f"s_lshl_b32 {S['s0']}, {S['st3']}, 7")
    e(f"s_add_u32 {S['s0']}, {S['s0']}, {CS_OFF}")
    e(f"s_mul_i32 {S['s1']}, {S['rt']}, 86")
    e(f"s_add_u32 {S['s1']}, {S['s1']}, {S['st3']}")
    e(f"s_lshl_b32 {S['s1']}, {S['s1']}, 10")
    e(f"s_add_u32 {S['s1']}, {S['s1']}, {GP_OFF}")
    e(f"s_add_u32 {S['s2']}, {S['s1']}, 4096")
    def ld_cs(t):
        return [(f"buffer_load_dwordx4 {q4(CSR[t & 1] + 4*a)}, {vHF}, {srd(sWS)}, {S['s0']} offen offset:{t*128 + a*32} sc1", f"cs{t}") for a in range(4)]
    for x in ld_cs(0) + ld_cs(1):
        e(x[0], tag=x[1])
    def rd3(t, ks, b):
        base, o = (vL16, SLOT[t]) if SLOT[t] < 65536 else (vLH, SLOT[t] - 65536)
        return (f"ds_read_b128 {q4(W3F[b])}, {base} offset:{o + ks*1024}", f"wf{b}")
    def mf3(t, ks, b):
        d = AC3[t % 3]
        return f"v_mfma_f32_32x32x16_bf16 {q16(d)}, {q4(W3F[b])}, {HF(ks)}, {'0' if ks == 0 else q16(d)}"

    WDS = ["s4", "s5", "s6", "s7"]
    def chunk_starts():
        for cc in range(4):
            e(f"s_lshl2_add_u32 {S['t0']}, {S['w']}, {cc}")
            e(f"s_lshl_b32 {S['t2']}, 1, {S['t0']}")
            e(f"s_sub_u32 {S['t2']}, {S['t2']}, 1")
            e(f"s_and_b32 {S['t2']}, {S['t2']}, 0x1133")
            e(f"s_bcnt1_i32_b32 {S['t2']}, {S['t2']}")
            e(f"s_mul_i32 {S['t0']}, {S['t0']}, 5")
            e(f"s_add_u32 {WDS[cc]}, {S['t0']}, {S['t2']}")
    chunk_starts()
    slots4 = [(t, cc) for t in range(5) for cc in range(4)] + [(5, 0), (5, 1)]
    e(f"s_lshr_b32 {S['t0']}, {S['w']}, 1")
    e(f"s_lshl1_add_u32 {S['t0']}, {S['ct']}, {S['t0']}")
    e(f"s_lshl_b32 {S['t0']}, {S['t0']}, 10")
    e(f"s_add_u32 s8, {S['t0']}, {WD_OFF}")
    def ld_wd(i):
        t, cc = slots4[i]
        def f():
            e(f"s_add_u32 {S['t0']}, {WDS[cc]}, {t}")
            e(f"s_lshl_b32 {S['t0']}, {S['t0']}, 14")
            e(f"s_add_u32 {S['t0']}, {S['t0']}, s8")
            e(f"s_xor_b32 {S['t3']}, {S['t0']}, 1024")
            e(f"buffer_load_dwordx4 a[{8*i}:{8*i+3}], {vL16}, {srd(sWS)}, {S['t0']} offen sc1", tag="wd")
            e(f"buffer_load_dwordx4 a[{8*i+4}:{8*i+7}], {vL16}, {srd(sWS)}, {S['t3']} offen sc1", tag="wd")
        return f

    for b, (t, ks) in enumerate([(0, 0), (1, 0), (0, 1), (1, 1)]):
        x = rd3(t, ks, b); e(x[0], tag=x[1])
    seq = [(t, ks) for ks in range(32) for t in range(2)] + [(t, ks) for t in range(2, 6) for ks in range(32)]
    epi_done = set()
    def epi(t):
        A = AC3[t % 3]; C = CSR[t & 1]; o = GO[t & 1]
        groups = []
        for p in range(2):
            for b in range(4):
                g, u = A + 8*p + b, A + 8*p + 4 + b
                tm = ET + 4*p + b
                groups.append([
                    f"v_fma_f32 v{g}, -{vMean}, v{C + 8*p + b}, v{g}",
                    f"v_fma_f32 v{u}, -{vMean}, v{C + 8*p + 4 + b}, v{u}",
                    f"v_mul_f32 v{tm}, v{g}, v{g}",
                    f"v_fma_f32 v{tm}, v{tm}, {vC3}, {vC1}",
                    f"v_mul_f32 v{tm}, v{tm}, v{g}",
                    f"v_exp_f32 v{tm}, v{tm}",
                    f"v_mul_f32 v{g}, v{g}, v{u}",
                    f"v_fma_f32 v{tm}, v{tm}, {vV}, {vV}",
                    f"v_rcp_f32 v{tm}, v{tm}",
                    f"v_mul_f32 v{g}, v{g}, v{tm}"])
        r = [lambda t=t: k.wait(vm=f"cs{t}")]
        for j in range(10):
            for gp in groups:
                r.append(gp[j])
        for p in range(2):
            for h in range(2):
                r.append(f"v_cvt_pk_bf16_f32 v{o + 2*p + h}, v{A + 8*p + 2*h}, v{A + 8*p + 2*h + 1}")
        so = S['s1'] if t < 4 else S['s2']
        r.append((f"buffer_store_dwordx4 {q4(o)}, {vL16}, {srd(sWS)}, {so} offen offset:{(t % 4)*1024} sc1", f"gs{t}"))
        if t + 2 < 6:
            r += ld_cs(t + 2)
        r.append(lambda t=t: epi_done.add(t))
        return r
    def stats_final():
        r = [lambda: k.wait(vm="sts")]
        for n in (8, 4, 2, 1):
            for j in range(n):
                r.append(f"v_add_f32 v{STT+j}, v{STT+j}, v{STT+j+n}")
        r += [f"v_mov_b32 v{STT+1}, v{STT}",
              f"s_nop 1",
              f"v_permlane32_swap_b32 v{STT}, v{STT+1}",
              f"v_mul_f32 {vMean}, {f2u(1/512)}, v{STT}",
              f"v_mul_f32 v{STT+2}, {vMean}, {vMean}",
              f"v_fma_f32 v{STT+2}, -v{STT+2}, 1.0, 0",
              f"v_fmamk_f32 {vV}, v{STT+1}, {f2u(1/512)}, v{STT+2}",
              f"v_max_f32 {vV}, 0, {vV}",
              f"v_add_f32 {vV}, {f2u(1e-5)}, {vV}",
              f"v_rsq_f32 v{STT+3}, {vV}",
              f"s_nop 0",
              f"v_mul_f32 {vC1}, {f2u(-2*0.7978845608028654*LOG2E)}, v{STT+3}",
              f"v_mul_f32 v{STT+3}, v{STT+3}, v{STT+3}",
              f"v_mul_f32 v{STT+3}, {f2u(0.044715)}, v{STT+3}",
              f"v_mul_f32 {vC3}, {vC1}, v{STT+3}"]
        return r

    NB = 6
    def run_stream(i0, i1, fillers, per, last):
        fi = 0
        def put(f):
            if callable(f): f()
            elif isinstance(f, tuple): e(f[0], tag=f[1])
            else: e(f)
        for i in range(i0, i1):
            t, ks = seq[i]
            if ks == 0 and t >= 3:
                assert (t - 3) in epi_done, t
            if i < 64 and t == 0:
                k.wait(vm=f"h{ks}", lg=f"wf{i % NB}")
            else:
                k.wait(lg=f"wf{i % NB}")
            e(mf3(t, ks, i % NB))
            if i + 4 < last:
                x = rd3(seq[i+4][0], seq[i+4][1], (i+4) % NB); e(x[0], tag=x[1])
            n = 0
            while n < per and fi < len(fillers):
                f = fillers[fi]; fi += 1
                put(f)
                n += 2 if (isinstance(f, str) and (f.startswith("v_exp") or f.startswith("v_rcp"))) else 1
        return fillers[fi:]

    rest = run_stream(0, 60, [], 0, 192)
    rest = run_stream(60, 64, stats_final(), 5, 192)
    rest2 = rest
    k.wait(vm="w3_3")
    e("s_barrier")
    fill = rest2 + [lambda: dma_w3(4), lambda: dma_w3(5)] + epi(0) + [ld_wd(i) for i in range(0, 6)] + epi(1) + \
        [ld_wd(i) for i in range(6, 12)]
    rest = run_stream(64, 96, fill, 5, 192)
    fill = rest + epi(2) + [ld_wd(i) for i in range(12, 22)]
    rest = run_stream(96, 124, fill, 5, 128)
    k.wait(vm="w3_5")
    e("s_barrier")
    rest = run_stream(124, 128, rest, 5, 160)
    fill = rest + epi(3)
    rest = run_stream(128, 160, fill, 5, 160)
    for f in rest:
        if callable(f): f()
        elif isinstance(f, tuple): e(f[0], tag=f[1])
        else: e(f)
    l5 = k.lab("five"); lj = k.lab("join")
    e(f"s_cmp_lt_u32 {S['sz3']}, 6")
    e(f"s_cbranch_scc1 {l5}")
    import copy
    sv = (copy.deepcopy(k.vm), copy.deepcopy(k.lg))
    for b in range(4):
        x = rd3(5, b, (160 + b) % NB); e(x[0], tag=x[1])
    rest = run_stream(160, 192, epi(4), 5, 192)
    for f in rest + epi(5):
        if callable(f): f()
        elif isinstance(f, tuple): e(f[0], tag=f[1])
        else: e(f)
    e("s_waitcnt vmcnt(0) lgkmcnt(0)")
    e(f"s_branch {lj}")
    e(f"{l5}:")
    k.vm, k.lg = sv
    for f in epi(4):
        if callable(f): f()
        elif isinstance(f, tuple): e(f[0], tag=f[1])
        else: e(f)
    e("s_waitcnt vmcnt(0) lgkmcnt(0)")
    e(f"{lj}:")
    e("s_barrier")
    e(f"s_lshl_b32 {S['t0']}, {S['B']}, 7")
    e(f"s_add_u32 {S['t0']}, {S['t0']}, {CNT + C_G*128}")
    e(f"s_lshr_b32 {S['t2']}, {S['rb2']}, 1")
    e(f"s_lshl_b32 {S['t2']}, {S['t2']}, 7")
    e(f"s_add_u32 {S['t2']}, {S['t2']}, {CNT + C_G*128}")
    if debug:
        e("s_memrealtime s[12:13]")
        e("s_waitcnt lgkmcnt(0)")
    def sig4():
        setexec(1)
        e(f"buffer_atomic_add {vOne}, {vL128}, {srd(sWS)}, {S['t0']} offen sc1")
        poll(vL128, S['t2'], 1, 16, vPT, presleep=6)
    wave0(sig4)
    def GF(i, sp):
        n = 2*i + sp
        if n < 20:
            return f"a[{176 + 4*n}:{179 + 4*n}]"
        if n < 44:
            return q4(28 + 4*(n - 20))
    e(f"s_and_b32 {S['t0']}, {S['w']}, 1")
    e(f"s_lshl1_add_u32 {S['t0']}, {S['rb2']}, {S['t0']}")
    e(f"s_xor_b32 {S['t1']}, {S['t0']}, 1")
    e(f"s_mul_i32 {S['t0']}, {S['t0']}, {86*1024}")
    e(f"s_mul_i32 {S['t1']}, {S['t1']}, {86*1024}")
    e(f"s_add_u32 {S['s0']}, {S['t0']}, {GP_OFF}")
    e(f"s_add_u32 {S['s1']}, {S['t1']}, {GP_OFF}")
    for cc in range(4):
        e(f"s_lshl_b32 {WDS[cc]}, {WDS[cc]}, 10")
    e("s_barrier")
    if debug:
        e("s_memrealtime s[14:15]")
        e("s_waitcnt lgkmcnt(0)")
    for i, (t, cc) in enumerate(slots4):
        e(f"s_add_u32 {S['t0']}, {WDS[cc]}, {S['s0']}")
        e(f"s_add_u32 {S['t1']}, {WDS[cc]}, {S['s1']}")
        if t >= 4:
            e(f"s_add_u32 {S['t0']}, {S['t0']}, 4096")
            e(f"s_add_u32 {S['t1']}, {S['t1']}, 4096")
        e(f"buffer_load_dwordx4 {GF(i, 0)}, {vL16}, {srd(sWS)}, {S['t0']} offen offset:{(t % 4)*1024} sc1", tag=f"g{i}")
        e(f"buffer_load_dwordx4 {GF(i, 1)}, {vL16}, {srd(sWS)}, {S['t1']} offen offset:{(t % 4)*1024} sc1", tag=f"g{i}")
    lsk = k.lab("skip21")
    for i in range(22):
        if i == 21:
            e(f"s_cmp_ge_u32 {S['w']}, 2")
            e(f"s_cbranch_scc1 {lsk}")
        k.wait(vm=f"g{i}")
        for sp in range(2):
            for nn in range(2):
                d = ACC[2*nn + sp]
                e(f"v_mfma_f32_32x32x16_bf16 {q16(d)}, a[{8*i + 4*nn}:{8*i + 4*nn + 3}], {GF(i, sp)}, {'0' if i == 0 else q16(d)}")
    e(f"{lsk}:")
    reduce_tiles()
    for j in range(8):
        e(f"v_lshlrev_b32 v{ACC[1]+2*j}, 16, v{HB+j}")
        e(f"v_and_b32 v{ACC[1]+2*j+1}, 0xffff0000, v{HB+j}")
    for j in range(16):
        e(f"v_add_f32 v{A0+j}, v{A0+j}, v{ACC[1]+j}")
    for j in range(8):
        e(f"v_cvt_pk_bf16_f32 v{HB+j}, v{A0+2*j}, v{A0+2*j+1}")
    e(f"buffer_store_dwordx4 {q4(HB)}, {vRes}, {srd(sOUT)}, {S['res']} offen")
    e(f"buffer_store_dwordx4 {q4(HB+4)}, {vRes}, {srd(sOUT)}, {S['res']} offen offset:16")
    if debug:
        e("s_memrealtime s[16:17]")
        e("s_waitcnt lgkmcnt(0)")
        e(f"s_cmp_lg_u32 {S['w']}, 0")
        e("s_cbranch_scc1 L_end")
        e(f"s_lshl_b32 {S['t0']}, s2, 6")
        e(f"s_add_u32 {S['t0']}, {S['t0']}, {STAMP_OFF}")
        setexec(1)
        srcs = [f"s{92+i}" for i in range(nst[0])] + ["s12", "s14", "s16"]
        for i, sname in enumerate(srcs):
            e(f"v_mov_b32 v28, {sname}")
            e(f"buffer_store_dword v28, off, {srd(sWS)}, {S['t0']} offset:{4*i}")
            e("s_nop 1")
        e("s_cmp_lg_u32 s2, 100")
        e("s_cbranch_scc1 L_end")
        for i, sname in enumerate(srcs):
            e(f"s_sub_u32 s20, {sname}, s92")
            e(f"v_mov_b32 v28, s20")
            e(f"buffer_store_dword v28, off, {srd(sDBG)}, 0 offset:{4*i+4}")
            e("s_nop 1")
    e("L_end:")
    e("s_endpgm")

    n = k.fix_hazards(verbose=False)
    if k.errors:
        for x in k.errors[:20]:
            print("ERR", x, file=sys.stderr)
        raise SystemExit("pending-load errors")
    hdr = open("sequential_preLN__linear_attn_block__geglu_ffn__prompt.s.ref").read().split("; Override")[0]
    out = hdr + f"; @launch grid=(256,1,1) block=(256,1,1) lds={LDS_BYTES}\n"
    out += '.amdgcn_target "amdgcn-amd-amdhsa--gfx950"\n.text\n'
    out += f".globl {NAME}\n.p2align 8\n.type {NAME},@function\n{NAME}:\n"
    out += k.text()
    out += '.section .rodata,"a"\n.p2align 6\n'
    out += f""".amdhsa_kernel {NAME}
  .amdhsa_next_free_vgpr 512
  .amdhsa_next_free_sgpr 102
  .amdhsa_accum_offset 256
  .amdhsa_group_segment_fixed_size 0
  .amdhsa_kernarg_size 80
  .amdhsa_user_sgpr_count 2
  .amdhsa_user_sgpr_kernarg_segment_ptr 1
  .amdhsa_system_sgpr_workgroup_id_x 1
.end_amdhsa_kernel
"""
    print(f"generated {len(k.L)} lines, {n} hazard states inserted", file=sys.stderr)
    return out


if __name__ == "__main__":
    dbg = "--debug" in sys.argv
    o = [a for a in sys.argv[1:] if not a.startswith("--")]
    open(o[0], "w").write(gen(debug=dbg))
```
